```python
import torch

def _softmax(x, axis=-1):
    return torch.softmax(x, dim=axis)
def _gelu(x):
    return torch.nn.functional.gelu(x, approximate="tanh")
def _silu(x):
    return torch.nn.functional.silu(x)
def _sigmoid(x):
    return torch.sigmoid(x)
def _layernorm(x, axis=-1, eps=1e-5):
    m = x.mean(dim=axis, keepdim=True)
    v = x.var(dim=axis, keepdim=True, unbiased=False)
    return (x - m) / torch.sqrt(v + eps)
def _scatter_add(tgt, idx, src, axis=0):
    return tgt.clone().index_add_(axis, idx, src)
def _segment_sum(src, seg, n):
    out = torch.zeros((n,) + src.shape[1:], dtype=src.dtype)
    return out.index_add_(0, seg, src)
def _pad(x, pw):
    flat = tuple(v for pair in reversed(pw) for v in pair)
    return torch.nn.functional.pad(x, flat)

kernel_name = 'gated_mix__compressed_kv_cla__glu_gated_glu__prompt'

def setup_inputs():

    _w = (lambda a: (lambda t: t.to(torch.bfloat16) if t.is_floating_point() else t)(torch.as_tensor(a)))
    def _A_setup():
        B, H, Sq, Sk, D, M = 1, 32, 2048, 2048, 128, 512
        Dc = 4 * D
        return {
            "x": _w((lambda *s: torch.randn(*s, dtype=torch.bfloat16) * 0.05)(B, Sq, M)),
            "c_kv": _w((lambda *s: torch.randn(*s, dtype=torch.bfloat16) * 0.8)(B, Sk, Dc)),
            "w_q": _w((lambda *s: torch.randn(*s, dtype=torch.bfloat16) * 6.4)(M, H, D) * (M ** -0.5)),
            "w_uk": _w((lambda *s: torch.randn(*s, dtype=torch.bfloat16) * 6.4)(Dc, H, D) * (Dc ** -0.5)),
            "w_uv": _w((lambda *s: torch.randn(*s, dtype=torch.bfloat16) * 0.8)(Dc, H, D) * (Dc ** -0.5)),
            "w_o": _w((lambda *s: torch.randn(*s, dtype=torch.bfloat16) * 0.8)(H, D, M) * ((H * D) ** -0.5)),
        }
    _A_in = _A_setup()

    def _B_setup():
        B, S, D, F = 1, 2048, 512, 1792
        return {
            "x": _w((lambda *s: torch.randn(*s, dtype=torch.bfloat16) * 0.05)(B, S, D)),
            "w_gate": _w((lambda *s: torch.randn(*s, dtype=torch.bfloat16) * 1.6)(D, F)),
            "w_up": _w((lambda *s: torch.randn(*s, dtype=torch.bfloat16) * 0.05)(D, F)),
            "w_down": _w((lambda *s: torch.randn(*s, dtype=torch.bfloat16) * 0.05)(F, D)),
        }
    _B_in = _B_setup()

    return {
        "A_x": _A_in["x"],
        "A_c_kv": _A_in["c_kv"],
        "A_w_q": _A_in["w_q"],
        "A_w_uk": _A_in["w_uk"],
        "A_w_uv": _A_in["w_uv"],
        "A_w_o": _A_in["w_o"],
        "B_x": _B_in["x"],
        "B_w_gate": _B_in["w_gate"],
        "B_w_up": _B_in["w_up"],
        "B_w_down": _B_in["w_down"],
        "gate_w": _w((lambda *s: torch.randn(*s, dtype=torch.bfloat16) * 0.05)(512) * 16.0),
    }

def reference(A_x, A_c_kv, A_w_q, A_w_uk, A_w_uv, A_w_o, B_x, B_w_gate, B_w_up, B_w_down, gate_w):
    def _A_ref(x, c_kv, w_q, w_uk, w_uv, w_o):
        B, Sq, M = x.shape[0], x.shape[1], x.shape[2]
        Sk = c_kv.shape[1]
        H, D = w_q.shape[1], w_q.shape[2]
        q = torch.einsum("bqm,mhd->bhqd", x, w_q)
        k = torch.einsum("bkc,chd->bhkd", c_kv, w_uk)
        v = torch.einsum("bkc,chd->bhkd", c_kv, w_uv)
        scores = torch.einsum("bhqd,bhkd->bhqk", q, k) * (D ** -0.5)
        off = Sk - Sq
        qi = torch.arange(Sq)[:, None]
        kj = torch.arange(Sk)[None, :]
        cmask = kj <= (qi + off)
        scores = torch.where(cmask[None, None], scores, -1e9)
        p = _softmax(scores, axis=-1)
        ctx = torch.einsum("bhqk,bhkd->bhqd", p, v)
        return torch.einsum("bhqd,hdm->bqm", ctx, w_o)

    def _B_ref(x, w_gate, w_up, w_down):
        g = torch.einsum("bsd,df->bsf", x, w_gate)
        u = torch.einsum("bsd,df->bsf", x, w_up)
        h = _sigmoid(g) * u
        return torch.einsum("bsf,fd->bsd", h, w_down)

    x = A_x
    g = _sigmoid((x * gate_w).sum(-1, keepdims=True))
    a = _A_ref(x, A_c_kv, A_w_q, A_w_uk, A_w_uv, A_w_o)
    b = _B_ref(x, B_w_gate, B_w_up, B_w_down)
    return g * a + (1 - g) * b
```

```python
import re

TRANS = ('v_exp_f32', 'v_log_f32', 'v_rcp_f32', 'v_rsq_f32', 'v_sqrt_f32', 'v_sin_f32', 'v_cos_f32')
_REG = re.compile(r'^(-|\|)?(abs\()?([vas])(?:(\d+)|\[(\d+):(\d+)\])[)|]?$')


def R(p, a, n=1):
    return '%s%d' % (p, a) if n == 1 else '%s[%d:%d]' % (p, a, a + n - 1)
def V(a, n=1): return R('v', a, n)
def Ac(a, n=1): return R('a', a, n)
def S(a, n=1): return R('s', a, n)


def regs_of(tok):
    tok = tok.strip()
    if tok == 'vcc': return {('s', 'vcc')}
    if tok == 'exec': return {('s', 'exec')}
    if tok == 'm0': return {('s', 'm0')}
    m = _REG.match(tok)
    if not m: return set()
    p = m.group(3)
    if m.group(4) is not None:
        return {(p, int(m.group(4)))}
    return {(p, i) for i in range(int(m.group(5)), int(m.group(6)) + 1)}


class I:
    __slots__ = ('text', 'kind', 'rd', 'wr', 'op', 'srcC', 'srcAB', 'data', 'tag', 'target')

    def __init__(self, text, tag=None):
        self.text = text = text.strip()
        self.tag = tag
        self.rd = set(); self.wr = set(); self.srcC = set(); self.srcAB = set(); self.data = set()
        self.target = None
        if text.endswith(':'):
            self.kind = 'label'; self.op = text[:-1]; return
        if text.startswith('.') or text.startswith(';'):
            self.kind = 'dir'; self.op = text; return
        sp = text.split(None, 1)
        op = self.op = sp[0]
        rest = sp[1] if len(sp) > 1 else ''
        toks = [t.strip() for t in rest.split(',')] if rest else []
        mods = ''
        if toks:
            l = toks[-1].split(None, 1)
            toks[-1] = l[0]
            mods = l[1] if len(l) > 1 else ''
        rs = [regs_of(t) for t in toks]
        U = lambda xs: set().union(*xs) if xs else set()
        if op.startswith('v_mfma'):
            self.kind = 'mfma'
            self.wr = rs[0]; self.srcAB = rs[1] | rs[2]; self.srcC = rs[3]; self.rd = self.srcAB | self.srcC
        elif op.startswith('v_'):
            self.kind = 'trans' if op.replace('_e32', '').replace('_e64', '') in TRANS else 'valu'
            if op.startswith('v_permlane') and 'swap' in op:
                self.wr = rs[0] | rs[1]; self.rd = rs[0] | rs[1]
            elif op.startswith('v_cmpx'):
                raise ValueError('no cmpx')
            elif op.startswith(('v_add_co', 'v_sub_co', 'v_addc_co', 'v_subb_co')):
                self.wr = rs[0] | rs[1]; self.rd = U(rs[2:])
            else:
                self.wr = rs[0]; self.rd = U(rs[1:])
                if op.startswith(('v_fmac', 'v_dot2c', 'v_writelane')) or 'dpp' in op or 'row_' in mods or 'quad_perm' in mods:
                    self.rd |= rs[0]
        elif op.startswith('ds_read') or op.startswith('ds_bpermute') or op.startswith('ds_swizzle'):
            self.kind = 'ds'; self.wr = rs[0]; self.rd = U(rs[1:])
        elif op.startswith('ds_'):
            self.kind = 'ds'; self.rd = U(rs)
            if '_rtn' in op: self.wr = rs[0]; self.rd = U(rs[1:])
        elif op.startswith('buffer_load'):
            if re.search(r'\blds\b', mods):
                self.kind = 'dma'; self.rd = U(rs) | {('s', 'm0')}
            else:
                self.kind = 'vload'; self.wr = rs[0]; self.rd = U(rs[1:])
        elif op.startswith('buffer_store'):
            self.kind = 'vstore'; self.rd = U(rs); self.data = rs[0]
        elif op.startswith('buffer_atomic'):
            self.kind = 'vstore'; self.rd = U(rs); self.data = rs[0]
            if 'sc0' in mods: self.kind = 'vload'; self.wr = rs[0]
        elif op in ('buffer_inv', 'buffer_wbl2'):
            self.kind = 'vstore'
        elif op.startswith('global_load'):
            self.kind = 'vload'; self.wr = rs[0]; self.rd = U(rs[1:])
        elif op.startswith(('s_load', 's_memtime', 's_memrealtime')):
            self.kind = 'smem'; self.wr = rs[0]; self.rd = U(rs[1:])
        elif op == 's_waitcnt':
            self.kind = 'wait'
        elif op == 's_nop':
            self.kind = 'nop'
        elif op == 's_barrier':
            self.kind = 'barrier'
        elif op in ('s_endpgm',):
            self.kind = 'end'
        elif op.startswith(('s_branch', 's_cbranch')):
            self.kind = 'branch'; self.target = toks[0]
            if 'vcc' in op: self.rd = {('s', 'vcc')}
        elif op.startswith('s_'):
            self.kind = 'salu'
            if op.startswith(('s_cmp', 's_bitcmp', 's_setprio', 's_sleep')):
                self.rd = U(rs)
            else:
                self.wr = rs[0]; self.rd = U(rs[1:])
                if 'saveexec' in op: self.wr = self.wr | {('s', 'exec')}
                if op.startswith(('s_addk', 's_mulk')): self.rd |= rs[0]
        else:
            raise ValueError('unknown instruction: ' + text)

    def states(self):
        if self.kind in ('label', 'dir'): return 0
        if self.kind == 'nop': return int(self.text.split()[1], 0) + 1
        return 1


class WaitL:
    kind = 'wait'
    def __init__(self, regs=None): self.regs = regs
class WaitV:
    kind = 'wait'
    def __init__(self, tags=None, regs=None): self.tags = tags; self.regs = regs
class WaitLV:
    kind = 'wait'
    def __init__(self, lregs=None, tags=None): self.lregs = lregs; self.tags = tags


class Em:
    def __init__(self):
        self.out = []
        self.lq = []
        self.vq = []
        self.smem = set()
        self.auto_waits = []
        self.nlab = 0

    def lab(self, base):
        self.nlab += 1
        return '%s_%d' % (base, self.nlab)

    def state(self): return (list(self.lq), list(self.vq))
    def set_state(self, st): self.lq = list(st[0]); self.vq = list(st[1])

    def _lcount(self, regs):
        if regs is None: return 0 if self.lq else None
        last = -1
        for i, d in enumerate(self.lq):
            if d & regs: last = i
        return None if last < 0 else min(len(self.lq) - 1 - last, 15)

    def _vcount(self, tags, regs=None):
        if tags is None and regs is None: return 0 if self.vq else None
        last = -1
        for i, (t, d) in enumerate(self.vq):
            if (tags is not None and t in tags) or (regs is not None and d & regs): last = i
        return None if last < 0 else min(len(self.vq) - 1 - last, 63)

    def _emit_wait(self, lc, vc):
        parts = []
        if vc is not None:
            parts.append('vmcnt(%d)' % vc); self.vq = self.vq[len(self.vq) - vc:] if vc else []
        if lc is not None:
            parts.append('lgkmcnt(%d)' % lc); self.lq = self.lq[len(self.lq) - lc:] if lc else []
            if lc == 0: self.smem = set()
        if parts: self.out.append(I('s_waitcnt ' + ' '.join(parts)))
        return bool(parts)

    def raw(self, text):
        self.out.append(I(text))

    def __call__(self, x, tag=None):
        if isinstance(x, (list, tuple)):
            for y in x: self(y)
            return
        if isinstance(x, WaitL): self._emit_wait(self._lcount(x.regs), None); return
        if isinstance(x, WaitV): self._emit_wait(None, self._vcount(x.tags, x.regs)); return
        if isinstance(x, WaitLV): self._emit_wait(self._lcount(x.lregs), self._vcount(x.tags)); return
        if isinstance(x, str):
            lines = [l for l in x.split('\n') if l.strip()]
            if len(lines) != 1:
                for l in lines: self(l, tag)
                return
            x = I(lines[0], tag)
        ins = x
        if ins.kind == 'wait':
            m = re.search(r'vmcnt\((\d+)\)', ins.text)
            if m:
                n = int(m.group(1)); self.vq = self.vq[max(len(self.vq) - n, 0):] if n else []
            m = re.search(r'lgkmcnt\((\d+)\)', ins.text)
            if m:
                n = int(m.group(1)); self.lq = self.lq[max(len(self.lq) - n, 0):] if n else []
                if n == 0: self.smem = set()
            self.out.append(ins); return
        touched = ins.rd | ins.wr
        if touched:
            if touched & self.smem:
                self.out.append(I('s_waitcnt lgkmcnt(0)')); self.lq = []; self.smem = set()
                self.auto_waits.append(('smem', ins.text))
            lc = self._lcount(touched); vc = self._vcount(None, touched)
            if lc is not None and self.smem: lc = 0
            if lc is not None or vc is not None:
                self._emit_wait(lc, vc)
                self.auto_waits.append((len(self.out), ins.text))
        self.out.append(ins)
        if ins.kind == 'ds': self.lq.append(set(ins.wr))
        elif ins.kind in ('dma', 'vload', 'vstore'): self.vq.append((ins.tag, set(ins.wr)))
        elif ins.kind == 'smem': self.smem |= ins.wr; self.lq.append(set())


class Op:
    __slots__ = ('x', 'lo', 'hi', 'kind', 'glue')
    def __init__(self, x, lo=None, hi=None, tag=None, glue=False):
        if isinstance(x, str): x = I(x, tag)
        self.x = x; self.lo = lo; self.hi = hi; self.kind = x.kind; self.glue = glue


COST = {'salu': 4, 'wait': 4, 'nop': 4, 'ds': 8, 'dma': 12, 'vload': 12, 'vstore': 12, 'valu': 4, 'trans': 8,
        'barrier': 4, 'branch': 4, 'smem': 4}


def short(out, c):
    dist = 0
    for p in reversed(out[-14:]):
        if p.kind in ('label', 'dir'): continue
        if _need(p, c) > dist: return True
        dist += p.states()
    return False


def schedule(em, mains, streams, G=16, report=None, prio=None):
    n = len(mains)
    heads = [0] * len(streams)
    eff = []
    for st in streams:
        e = [0] * len(st); cur = n - 1
        for i in range(len(st) - 1, -1, -1):
            if st[i].hi is not None: cur = min(cur, st[i].hi)
            e[i] = cur
        eff.append(e)
    over = 0
    for g in range(-1, n):
        if g >= 0: em(mains[g])
        t = 4; prev = 'mfma'
        budget = G if g >= 0 else 0
        while True:
            best = None
            for si, st in enumerate(streams):
                h = heads[si]
                if h >= len(st): continue
                op = st[h]
                forced = eff[si][h] <= g
                if not forced and (g < 0 or (op.lo is not None and op.lo > g)): continue
                k = op.kind
                if k in ('valu', 'trans'): start = max(t, 8)
                elif k in ('ds', 'dma', 'vload', 'vstore') and prev in ('valu', 'trans'): start = t + 4
                else: start = t
                end = start + COST[k]
                if not forced and end > budget: continue
                if not forced and isinstance(op.x, I) and short(em.out, op.x): continue
                mem = k in ('ds', 'dma', 'vload', 'vstore')
                if t == 4: cls = 0 if mem else (1 if k not in ('valu', 'trans') else 2)
                else: cls = 0
                key = (0 if forced else 1, cls, prio.get(si, 5) if prio else 0, eff[si][h], si)
                if best is None or key < best[0]: best = (key, si, end, k)
            if best is None: break
            _, si, end, k = best
            op = streams[si][heads[si]]
            assert op.lo is None or op.lo <= g or g == n - 1, 'forced before earliest gap: %s lo %d gap %d' % (getattr(op.x, 'text', op.x), op.lo, g)
            n0 = len(em.out)
            em(op.x)
            heads[si] += 1
            if len(em.out) > n0:
                t = end; prev = k
        if g >= 0 and t > G: over += t - G
    for si, st in enumerate(streams):
        assert heads[si] == len(st), 'unscheduled ops in stream %d' % si
    if report is not None: report.append(over)
    return over


def _need(p, c):
    need = 0
    pv = p.kind in ('valu', 'trans'); cv = c.kind in ('valu', 'trans')
    vec = lambda s: {r for r in s if r[0] in 'va'}
    sca = lambda s: {r for r in s if r[0] == 's'}
    if pv:
        w = vec(p.wr)
        if c.kind == 'mfma' and w & c.rd: need = max(need, 2)
        if cv and w & c.rd:
            if p.kind == 'trans' and c.kind != 'trans': need = max(need, 1)
            if c.op.startswith(('v_readlane', 'v_readfirstlane')): need = max(need, 1)
            if c.op.startswith('v_permlane') or 'dpp' in c.text or 'row_' in c.text or 'quad_perm' in c.text: need = max(need, 2)
        ws = sca(p.wr)
        if ws:
            if cv and ws & c.rd: need = max(need, 4 if c.op.startswith(('v_readlane', 'v_writelane')) else 2)
            if c.kind in ('dma', 'vload', 'vstore') and ws & c.rd: need = max(need, 5)
            if c.kind in ('salu', 'branch', 'smem') and ws & c.rd: need = max(need, 4)
    if p.kind == 'mfma':
        big = '32x32' in p.op
        d = p.wr
        if c.kind == 'mfma':
            if d & c.srcAB: need = max(need, 12 if big else 8)
            if d & c.srcC and d != c.srcC: need = max(need, 10 if big else 6)
            if d & c.wr and d != c.wr: need = max(need, 10 if big else 6)
        elif cv or c.kind in ('ds', 'dma', 'vload', 'vstore'):
            if d & (c.rd | c.wr): need = max(need, 12 if big else 8)
        if cv and p.srcC & c.wr: need = max(need, 7 if big else 3)
    if p.kind == 'salu' and ('s', 'm0') in p.wr and c.kind == 'dma': need = max(need, 1)
    if p.kind == 'vstore' and len(p.data) >= 3 and p.data & c.wr: need = max(need, 2 if cv else 1)
    if p.kind == 'salu' and ('s', 'exec') in p.wr and False: pass
    return need


def hazard_pass(ins, verbose=False):
    MAXD = 12
    out = list(ins)
    inserted = 0
    changed = True
    while changed:
        changed = False
        labels = {x.op: i for i, x in enumerate(out) if x.kind == 'label'}
        jumps = {}
        for i, x in enumerate(out):
            if x.kind == 'branch': jumps.setdefault(x.target, []).append(i)
        i = 0
        fix = []
        for i, c in enumerate(out):
            if c.kind in ('label', 'dir', 'nop', 'wait', 'barrier', 'end'): continue
            worst = 0; why = None
            stack = [(i - 1, 0)]
            seen = set()
            while stack:
                j, dist = stack.pop()
                while j >= 0 and dist < MAXD:
                    if (j, dist) in seen: break
                    seen.add((j, dist))
                    p = out[j]
                    if p.kind == 'label':
                        for b in jumps.get(p.op, []): stack.append((b, dist))
                        k = j - 1
                        while k >= 0 and out[k].kind in ('dir',): k -= 1
                        if k >= 0 and (out[k].kind == 'end' or out[k].op == 's_branch'): break
                    elif p.kind != 'dir':
                        nd = _need(p, c)
                        if nd - dist > worst: worst = nd - dist; why = p
                        dist += p.states()
                    j -= 1
            if worst > 0: fix.append((i, worst, why))
        last = -100; off = 0
        for (i, w, why) in fix:
            if i - last < MAXD + 2: changed = True; continue
            if verbose: print('nop %d before [%s] due to [%s]' % (w, out[i + off].text, why.text))
            out.insert(i + off, I('s_nop %d' % (w - 1)))
            off += 1; last = i; inserted += 1; changed = True
    return out, inserted


def render(ins):
    return '\n'.join(x.text for x in ins) + '\n'
```

```python
import sys, math, struct
from core import *

NAME = 'gated_mix__compressed_kv_cla__glu_gated_glu__prompt'
MF = 'v_mfma_f32_16x16x32_bf16'
MB = 1 << 20

WS_KV = 0
WS_CTX = 32 * MB
WS_H = 48 * MB
WS_G = 56 * MB
WS_Q = 58 * MB
WS_SIZE = 76 * MB

sX, sC, sWQ, sWK, sWV, sWO, sWG, sWU, sWD, sGW, sOUT, sWS, sDBG = [4 + 4 * i for i in range(13)]
sH, sI, sW, sFC = 56, 57, 58, 59
sTB = 60
sKP = 61
sT0, sT1, sT2, sT3 = 65, 66, 67, 68
sSO = 69
sM0W, sM0A = 70, 71
sPAN = 72
sACT = 74
sST = 75
sQS, sNL = 76, 77
sROWC, sROWX = 78, 79
sST2 = 80
sIT, sTD, sTI = 81, 82, 83
sSRC = 84
sKVH = 85
sNUL = 88
sE0 = 92
sBAD = 94

vL16 = 1
vWR = 2
vWR2 = 20
vAR = 6
vDW, vDF = 8, 9
vDA = 10
vT = 24
vSP = 32
vQ = 64
vO = 128

OPT = dict(rot=0, pf=1, wspan=4.0, trickle=1, xspan=2.5)
def f32(x): return '0x%08x' % struct.unpack('<I', struct.pack('<f', x))[0]


def emit_setup(E, need):
    E('s_cmp_ge_u32 s2, 256')
    E('s_cbranch_scc1 %s' % E.endlab)
    tab = [(sX, 0, 2 * MB), (sC, 8, 2 * MB), (sWQ, 16, 4 * MB), (sWK, 24, 4 * MB), (sWV, 32, 4 * MB), (sWO, 40, 4 * MB),
           (sWG, 56, 1835008), (sWU, 64, 1835008), (sWD, 72, 1835008), (sGW, 80, 1024), (sOUT, 88, 2 * MB),
           (sDBG, 96, 256), (sWS, 104, WS_SIZE)]
    tab = [t for t in tab if t[0] in need]
    for s, off, sz in tab: E('s_load_dwordx2 %s, s[0:1], %d' % (S(s, 2), off))
    for s, off, sz in tab:
        E('s_mov_b32 %s, 0x%x' % (S(s + 2), sz))
        E('s_mov_b32 %s, 0x20000' % S(s + 3))
    E('v_lshrrev_b32 v1, 6, v0')
    E('v_and_b32 v0, 63, v0')
    E('v_readfirstlane_b32 %s, v1' % S(sW))
    E('v_lshlrev_b32 v%d, 4, v0' % vL16)


def code_prefetch(E, name, nkb):
    if not OPT['pf']: return
    E('s_getpc_b64 %s' % S(sE0, 2))
    E('s_and_b32 %s, %s, 0xffffff00' % (S(sE0), S(sE0)))
    E('s_lshr_b32 %s, s2, 3' % S(sT0))
    E('s_lshl_b32 %s, %s, 2' % (S(sT0), S(sT0)))
    E('s_add_u32 %s, %s, %s' % (S(sT0), S(sT0), S(sW)))
    E('s_min_u32 %s, %s, %s' % (S(sT0), S(sT0), nkb))
    E('s_lshl_b32 %s, %s, 10' % (S(sT0), S(sT0)))
    E('v_add_u32 v%d, %s, v%d' % (vT + 4, S(sT0), vL16))
    E('global_load_dword v%d, v%d, %s' % (vT + 4, vT + 4, S(sE0, 2)), 'pf')


def emit_ids(E):
    E('s_and_b32 %s, s2, 7' % S(sT0))
    E('s_lshr_b32 %s, s2, 3' % S(sT1))
    E('s_and_b32 %s, %s, 3' % (S(sT2), S(sT1)))
    E('s_lshr_b32 %s, %s, 2' % (S(sI), S(sT1)))
    E('s_lshl_b32 %s, %s, 2' % (S(sH), S(sT0)))
    E('s_add_u32 %s, %s, %s' % (S(sH), S(sH), S(sT2)))
    E('s_sub_u32 %s, 15, %s' % (S(sT3), S(sI)))
    E('s_cmp_lt_u32 %s, 2' % S(sW))
    E('s_cselect_b32 %s, %s, %s' % (S(sT3), S(sT3), S(sI)))
    E('s_lshl_b32 %s, %s, 1' % (S(sT3), S(sT3)))
    E('s_and_b32 %s, %s, 1' % (S(sTB), S(sW)))
    E('s_add_u32 %s, %s, %s' % (S(sTB), S(sTB), S(sT3)))


def ab_setup(E):
    E('s_lshr_b32 %s, %s, 1' % (S(sT1), S(sT0)))
    E('s_mul_i32 %s, %s, 7' % (S(sT1), S(sT1)))
    E('s_and_b32 %s, %s, 1' % (S(sT0), S(sT0)))
    E('s_lshl_b32 %s, %s, 2' % (S(sFC), S(sT0)))
    E('s_add_u32 %s, %s, %s' % (S(sFC), S(sFC), S(sT2)))
    E('s_cmp_eq_u32 %s, 3' % S(sT2))
    E('s_cselect_b32 %s, 3, %s' % (S(sFC), S(sFC)))
    E('s_add_u32 %s, %s, %s' % (S(sFC), S(sFC), S(sT1)))
    E('s_lshr_b32 %s, %s, 2' % (S(sT1), S(sI)))
    E('s_xor_b32 %s, %s, %s' % (S(sT1), S(sT1), S(sT0)))
    E('s_cmp_eq_u32 %s, 3' % S(sT2))
    E('s_cselect_b32 %s, %s, 0' % (S(sBAD), S(sT1)))
    if OPT['rot'] == 1: E('s_add_u32 %s, %s, %s' % (S(sT1), S(sI), S(sT2)))
    elif OPT['rot'] == 2: E('s_and_b32 %s, s2, 3' % S(sT1))
    else: E('s_mov_b32 %s, 0' % S(sT1))
    for s in range(4):
        E('s_add_u32 %s, %s, %d' % (S(sKP + s), S(sT1), s))
        E('s_and_b32 %s, %s, 3' % (S(sKP + s), S(sKP + s)))
        E('s_lshl_b32 %s, %s, 7' % (S(sKP + s), S(sKP + s)))
    E('s_lshl_b32 %s, %s, 2' % (S(sT1), S(sI)))
    E('s_add_u32 %s, %s, %s' % (S(sT1), S(sT1), S(sW)))
    E('s_lshl_b32 %s, %s, 16' % (S(sROWC), S(sT1)))
    E('s_lshl_b32 %s, %s, 16' % (S(sROWX), S(sTB)))
    E('s_lshl_b32 %s, %s, 20' % (S(sKVH), S(sH)))
    E('s_lshl_b32 %s, %s, 15' % (S(sST), S(sT1)))
    E('s_add_u32 %s, %s, %s' % (S(sST), S(sST), S(sKVH)))
    E('s_lshr_b32 %s, %s, 1' % (S(sT1), S(sW)))
    E('s_lshl_b32 %s, %s, 3' % (S(sT1), S(sT1)))
    E('s_and_b32 %s, %s, 1' % (S(sT3), S(sW)))
    E('s_add_u32 %s, %s, %s' % (S(sT1), S(sT1), S(sT3)))
    E('s_lshl_b32 %s, %s, 10' % (S(sM0W), S(sT1)))
    E('s_lshl_b32 %s, %s, 14' % (S(sM0A), S(sW)))
    E('s_add_u32 %s, %s, %d' % (S(sM0A), S(sM0A), 96 * 1024))
    E('s_mov_b32 %s, %s' % (S(sQS), f32(math.log2(math.e) / math.sqrt(128.0))))
    E('s_mov_b32 %s, %s' % (S(sNL), f32(-math.log2(math.e))))
    t0, t1, t2, t3 = vT, vT + 1, vT + 2, vT + 3
    E('s_lshl_b32 %s, %s, 3' % (S(sT1), S(sT1)))
    E('v_lshrrev_b32 v%d, 3, v0' % t0)
    E('v_add_u32 v%d, %s, v%d' % (t0, S(sT1), t0))
    E('v_bfe_u32 v%d, v0, 1, 2' % t1)
    E('v_bfe_u32 v%d, v0, 4, 1' % t2)
    E('s_lshl_b32 %s, %s, 1' % (S(sT3), S(sT3)))
    E('v_or_b32 v%d, %s, v%d' % (t2, S(sT3), t2))
    E('v_xor_b32 v%d, v%d, v%d' % (t1, t1, t2))
    E('v_and_b32 v%d, 1, v0' % t2)
    E('v_lshlrev_b32 v%d, 4, v%d' % (t2, t2))
    E('v_lshl_add_u32 v%d, v%d, 5, v%d' % (t1, t1, t2))
    E('v_lshl_add_u32 v%d, v%d, 13, v%d' % (vDW, t0, t1))
    E('v_mul_u32_u24 v%d, 3584, v%d' % (t0, t0))
    E('v_add_u32 v%d, v%d, v%d' % (vDF, t0, t1))
    E('v_lshrrev_b32 v%d, 3, v0' % t0)
    E('v_and_b32 v%d, 7, v0' % t1)
    E('v_lshrrev_b32 v%d, 4, v0' % t2)
    E('v_xor_b32 v%d, v%d, v%d' % (t1, t1, t2))
    E('v_lshlrev_b32 v%d, 4, v%d' % (t1, t1))
    E('v_lshl_add_u32 v%d, v%d, 10, v%d' % (vDA, t0, t1))
    E('v_xor_b32 v%d, 64, v%d' % (vDA + 1, vDA))
    E('v_and_b32 v%d, 15, v0' % t0)
    E('v_lshrrev_b32 v%d, 1, v%d' % (t1, t0))
    E('v_xor_b32 v%d, v%d, v%d' % (t1, t1, t2))
    E('v_lshlrev_b32 v%d, 4, v%d' % (t1, t1))
    E('v_lshl_add_u32 v%d, v%d, 7, v%d' % (t1, t0, t1))
    E('v_add_u32 v%d, %s, v%d' % (vAR, S(sM0A), t1))
    E('v_xor_b32 v%d, 64, v%d' % (vAR + 1, vAR))
    E('v_bfe_u32 v%d, v0, 2, 2' % t0)
    E('v_lshl_add_u32 v%d, v%d, 3, v%d' % (t1, t2, t0))
    E('v_lshlrev_b32 v%d, 7, v%d' % (t1, t1))
    E('v_and_b32 v%d, 3, v0' % t3)
    E('v_lshl_add_u32 v%d, v%d, 3, v%d' % (t1, t3, t1))
    E('v_bfe_u32 v%d, v0, 3, 2' % t0)
    E('v_lshl_add_u32 v%d, v%d, 5, v%d' % (vWR, t0, t1))
    for c in range(1, 4): E('v_xor_b32 v%d, %d, v%d' % (vWR + c, 32 * c, vWR))
    for c in range(4): E('v_add_u32 v%d, 0x10000, v%d' % (vWR2 + c, vWR + c))


def ab_stream(E, ffn, sc=''):
    stages = []
    for s in range(4): stages.append(('K', s))
    for s in range(4): stages.append(('V', s))
    if ffn:
        for s in range(4): stages.append(('F', s))
    for hf in range(2):
        for s in range(2): stages.append(('Q%d' % hf, s))
    NS = len(stages)
    NB = 8 * NS

    def blocks(si):
        kind, s = stages[si]
        out = []
        for b in range(8):
            if kind in 'KV': out.append(dict(pan=b >> 2, c=b & 3, ap=s, acc=vO + 16 * b, first=s == 0, swap=kind == 'V'))
            elif kind == 'F': out.append(dict(pan=b & 1, c=b >> 1, ap=s, acc=vO + 16 * b, first=s == 0, swap=False))
            else:
                base = vQ if kind == 'Q0' else vO
                out.append(dict(pan=b & 1, c=b >> 1, ap=2 * s + (b & 1), acc=base + 16 * (b >> 1), first=(s == 0 and (b & 1) == 0), swap=False))
        return out
    blk = [b for si in range(NS) for b in blocks(si)]

    def frag(B, kk): return vSP + 16 * (B & 1) + 4 * kk
    mains = []
    for B, b in enumerate(blk):
        for tt in range(4):
            for kk in range(4):
                w = V(frag(B, kk), 4); x = Ac(16 * (4 * b['ap'] + kk) + 4 * tt, 4)
                acc = V(b['acc'] + 4 * tt, 4)
                c = '0' if (b['first'] and kk == 0) else acc
                mains.append('%s %s, %s, %s, %s' % (MF, acc, x if b['swap'] else w, w if b['swap'] else x, c))

    def w_reads(B):
        b = blk[B]; slot = (B >> 3) % 3
        base = (vWR2 if slot == 2 else vWR) + b['c']
        off = (slot & 1) * 32768 + b['pan'] * 16384
        return ['ds_read_b64_tr_b16 %s, v%d offset:%d' % (V(frag(B, kk) + 2 * jh, 2), base, off + kk * 4096 + jh * 512)
                for kk in range(4) for jh in range(2)]

    def w_dma(si):
        kind, s = stages[si]
        slot = si % 3
        pre = []
        if kind in 'KV':
            srd = [sWK if kind == 'K' else sWV] * 2; pitch = 8192; vo = vDW
            pre = ['s_lshl_b32 %s, %s, 13' % (S(sPAN), S(sKP + s)), 's_lshl_b32 %s, %s, 8' % (S(sPAN + 1), S(sH)),
                   's_add_u32 %s, %s, %s' % (S(sPAN), S(sPAN), S(sPAN + 1)), 's_add_u32 %s, %s, 128' % (S(sPAN + 1), S(sPAN))]
        elif kind == 'F':
            srd = [sWG, sWU]; pitch = 3584; vo = vDF
            pre = ['s_mul_i32 %s, %s, 3584' % (S(sPAN), S(sKP + s)), 's_lshl_b32 %s, %s, 7' % (S(sPAN + 1), S(sFC)),
                   's_add_u32 %s, %s, %s' % (S(sPAN), S(sPAN), S(sPAN + 1)), 's_mov_b32 %s, %s' % (S(sPAN + 1), S(sPAN))]
        else:
            srd = [sWQ] * 2; pitch = 8192; vo = vDW
            hf = int(kind[1])
            pre = ['s_lshl_b32 %s, %s, 8' % (S(sSO), S(sH)), 's_add_u32 %s, %s, %d' % (S(sSO), S(sSO), 128 * hf),
                   's_lshl_b32 %s, %s, 13' % (S(sPAN), S(sKP + 2 * s)), 's_lshl_b32 %s, %s, 13' % (S(sPAN + 1), S(sKP + 2 * s + 1)),
                   's_add_u32 %s, %s, %s' % (S(sPAN), S(sPAN), S(sSO)), 's_add_u32 %s, %s, %s' % (S(sPAN + 1), S(sPAN + 1), S(sSO))]
        out = []
        for p in range(2):
            for a in range(4):
                g = pre; pre = []
                g = g + ['s_add_u32 m0, %s, %d' % (S(sM0W), slot * 32768 + p * 16384 + a * 2048),
                         's_add_u32 %s, %s, %d' % (S(sSO), S(sPAN + p), a * 16 * pitch),
                         I('buffer_load_dwordx4 v%d, %s, %s offen lds' % (vo, S(srd[p], 4), S(sSO)), ('W', si))]
                out.append(g)
        return out

    def a_dma(which, n):
        srd, row = (sC, sROWC) if which == 'c' else (sX, sROWX)
        pre = ['s_lshl_b32 %s, %s, 1' % (S(sACT), S(sKP + (n >> 1))), 's_add_u32 %s, %s, %s' % (S(sACT), S(sACT), S(row))]
        out = []
        for q in range(8):
            g = pre; pre = []
            g = g + ['s_add_u32 m0, %s, %d' % (S(sM0A), (n & 1) * 8192 + q * 1024),
                     's_add_u32 %s, %s, %d' % (S(sSO), S(sACT), (n & 1) * 128 + q * 8192),
                     I('buffer_load_dwordx4 v%d, %s, %s offen lds' % (vDA + (q & 1), S(srd, 4), S(sSO)), (which, n))]
            out.append(g)
        return out

    def a_reads(n):
        return ['ds_read_b128 %s, v%d offset:%d' % (Ac(16 * (2 * n + kk) + 4 * tt, 4), vAR + kk, (n & 1) * 8192 + tt * 2048)
                for tt in range(4) for kk in range(2)]
    def a_regs(n): return {('a', r) for r in range(32 * n, 32 * n + 32)}

    for g in a_dma('c', 0): E(g)
    w0 = w_dma(0)
    for g in w0[:4]: E(g)
    for g in a_dma('c', 1): E(g)
    for g in w0[4:]: E(g)
    for g in w_dma(1): E(g)
    E(WaitV({('c', 0)}))
    E(a_reads(0))
    E(WaitV({('c', 1)}))
    E(a_reads(1))
    E(WaitL(a_regs(0)))
    for g in a_dma('c', 2): E(g)
    E(WaitV({('W', 0)}))
    E('s_barrier')
    E(w_reads(0))
    E(WaitL())
    stamp(E, 1)

    st_w = []
    for B in range(NB):
        if B + 1 < NB:
            for k, r in enumerate(w_reads(B + 1)): st_w.append(Op(r, 16 * B, 16 * B + k + 3))
            need = {('v', r) for r in range(frag(B + 1, 0), frag(B + 1, 0) + 16)} | {('a', r) for r in range(64 * blk[B + 1]['ap'], 64 * blk[B + 1]['ap'] + 64)}
            if (B + 2) % 8 == 0 and B + 2 < NB:
                st_w.append(Op(WaitLV(need, {('W', (B + 2) // 8)}), 16 * B + 15, 16 * B + 15))
                st_w.append(Op('s_barrier', 16 * B + 15, 16 * B + 15))
                for x in stamp_ops(1 + (B + 2) // 8 + (4 if (not ffn and B > 60) else 0)): st_w.append(Op(x, 16 * B + 15, 16 * B + 15))
            else:
                st_w.append(Op(WaitL(need), 16 * B + 15, 16 * B + 15))

    ev = []
    for si in range(2, NS):
        t0 = max(8 * (si - 2) - 1, 0)
        for k, g in enumerate(w_dma(si)): ev.append((t0 + k * (7.0 / 8 if si <= 4 else OPT['wspan'] / 8), 0, g, 1 << 30))
    def act(which, n, t_dma, span, t_rd, first_wait=True):
        for k, g in enumerate(a_dma(which, n)):
            if k == 0 and first_wait: g = [WaitL(a_regs((n - 2) % 8))] + g
            ev.append((t_dma + k * span / 8.0, 1, g, 1 << 30))
        act_rd(which, n, t_rd)
    def act_rd(which, n, t_rd):
        for k, r in enumerate(a_reads(n)):
            if which == 'c': use = 8 * (n >> 1)
            elif ffn: use = 8 * (8 + (n >> 1))
            else: use = 8 * (8 + (n >> 2)) + ((n >> 1) & 1)
            ev.append((t_rd + k * 0.2, 2, ([WaitV({(which, n)})] if k == 0 else []) + [r], 16 * use - 6 - (7 - k)))
    act_rd('c', 2, 3.0)
    act('c', 3, 0, 2, 5.0)
    act('c', 4, 5.0, 3.0, 11)
    act('c', 5, 8, 2.0, 13.0)
    act('c', 6, 13.0, 3.0, 19)
    act('c', 7, 16, 2.0, 21.0)
    step = 6 if ffn else 4
    for n in range(8):
        T = 40 + step * n
        act('x', n, T - 2 * step + 2.1, OPT['xspan'], T)
    ev.sort(key=lambda e: (e[0], e[1]))
    st_m = []
    for t, _, g, hard in ev:
        lo = int(t * 16)
        for k, x in enumerate(g):
            last = k == len(g) - 1
            isw = isinstance(x, (WaitL, WaitV))
            st_m.append(Op(x, lo if (last or isw) else None, min(lo + 24, hard) if last else None))

    eps = [[] for _ in range(4)]
    st_s = []
    def cvt(d, a): return 'v_cvt_pk_bf16_f32 v%d, v%d, v%d' % (d, a, a + 1)
    def store(r, base, off):
        return I('buffer_store_dwordx4 %s, v%d, %s, %s offen offset:%d %s' % (V(r, 4), vL16, S(sWS, 4), S(base), off, sc), 'st')
    def pack(d, a, b): return [cvt(d, a), cvt(d + 1, a + 2), cvt(d + 2, b), cvt(d + 3, b + 2)]
    LAT = 2
    def done(si, b, tt): return 16 * (8 * si + b) + 4 * tt + 3 + LAT
    def reuse(si, b, tt): return 16 * (8 * si + b) + 4 * tt - 1
    sB = [96, 97, 98, 99]
    def bases(vals, lo, hi):
        for k, (src, add) in enumerate(vals): st_s.append(Op('s_add_u32 %s, %s, %d' % (S(sB[k]), S(src), add), lo, hi))
    bases([(sST, 4096 * k) for k in range(4)], 0, 100)
    st_o = []
    tr = OPT['trickle']
    for p in range(4):
        for tt in range(4):
            a = vO + 16 * (2 * p) + 4 * tt; b = vO + 16 * (2 * p + 1) + 4 * tt
            d = vQ + 16 * p + 4 * tt
            ops = pack(d, a, b)
            hi = done(3, 2 * p + 1, tt) + 40
            eps[tt].append(Op(ops[0], done(3, 2 * p, tt))); eps[tt].append(Op(ops[1]))
            eps[tt].append(Op(ops[2], done(3, 2 * p + 1, tt))); eps[tt].append(Op(ops[3], None, hi))
            n = 4 * p + tt
            lo = max(hi + 1, 16 * 28 + (28 * n if tr else 0))
            st_o.append(Op(store(d, sB[tt], p * 1024), lo, lo + 20))
    for k in range(4): st_o.append(Op('s_add_u32 %s, %s, %d' % (S(sB[k]), S(sST), 16384 + 4096 * k)))
    for c in range(8):
        for ks in range(2):
            a = vO + 16 * c + 8 * ks; b = a + 4
            n = 2 * c + ks
            d = (vQ + 4 * n) if ffn else a
            ops = pack(d, a, b)
            e = eps[2 * (c & 1) + ks]
            hi = done(7, c, 2 * ks + 1) + 40
            assert 16 * 28 + 28 * n + 22 < done(7, c, 2 * ks)
            e.append(Op(ops[0], done(7, c, 2 * ks))); e.append(Op(ops[1]))
            e.append(Op(ops[2], done(7, c, 2 * ks + 1))); e.append(Op(ops[3], None, hi))
            lo = max(hi + 1, 16 * 60 + ((28 if ffn else 16) * n if tr else 0))
            st_o.append(Op(store(d, sB[c >> 1], ((c & 1) * 2 + ks) * 1024), lo, lo + 20))
            assert lo + 22 < 16 * 8 * (12 if ffn else 10)
    q0 = 12 if ffn else 8
    if ffn:
        lo = 16 * 8 * 9; hi = 16 * 8 * 10
        sB = [sT0, sT1]
        for x in ['s_mul_i32 %s, %s, 56' % (S(sB[0]), S(sTB)), 's_lshl_b32 %s, %s, 1' % (S(sB[1]), S(sFC)),
                  's_add_u32 %s, %s, %s' % (S(sB[0]), S(sB[0]), S(sB[1])), 's_lshl_b32 %s, %s, 12' % (S(sB[0]), S(sB[0])),
                  's_add_u32 %s, %s, %d' % (S(sB[0]), S(sB[0]), WS_H), 's_add_u32 %s, %s, 4096' % (S(sB[1]), S(sB[0]))]:
            st_s.append(Op(x, lo, hi))
        for fs in range(2):
            for tt in range(4):
                e = eps[tt]
                d = vO + 16 * (4 * fs) + 4 * tt
                for t in range(2):
                    g = vO + 16 * (4 * fs + 2 * t) + 4 * tt; u = g + 16
                    for r0 in (0, 2):
                        rs = (r0, r0 + 1)
                        for r in rs: e.append(Op('v_mul_f32 v%d, %s, v%d' % (g + r, S(sNL), g + r), done(11, 4 * fs + 2 * t, tt)))
                        for r in rs: e.append(Op('v_exp_f32 v%d, v%d' % (g + r, g + r)))
                        for r in rs: e.append(Op('v_add_f32 v%d, 1.0, v%d' % (g + r, g + r)))
                        for r in rs: e.append(Op('v_rcp_f32 v%d, v%d' % (g + r, g + r)))
                        for r in rs: e.append(Op('v_mul_f32 v%d, v%d, v%d' % (g + r, g + r, u + r), done(11, 4 * fs + 2 * t + 1, tt)))
                        e.append(Op(cvt(d + 2 * t + r0 // 2, g + r0)))
                e.append(Op(store(d, sB[fs], tt * 1024), None, (16 * 8 * 14 - 2) if fs == 0 else None))
    qs = [[] for _ in range(4)]
    for hf in range(2):
        base = vQ if hf == 0 else vO
        si = q0 + 2 * hf + 1
        for p in range(2):
            for tt in range(4):
                e = qs[tt]
                d = vQ + 16 * (2 * hf + p) + 4 * tt
                for t in range(2):
                    a = base + 16 * (2 * p + t) + 4 * tt
                    for r in range(4): e.append(Op('v_mul_f32 v%d, %s, v%d' % (a + r, S(sQS), a + r), done(si, 2 * (2 * p + t) + 1, tt)))
                    e.append(Op(cvt(d + 2 * t, a))); e.append(Op(cvt(d + 2 * t + 1, a + 2)))
    rep = []
    schedule(E, mains, [st_w, st_m, st_s, st_o] + eps + qs, report=rep, prio={1: 0, 0: 1})
    E.notes.append('AB(ffn=%d) overflow cycles %d' % (ffn, rep[0]))
    if not ffn:
        t0 = vT
        E('v_lshrrev_b32 v%d, 4, v0' % t0)
        E('v_lshlrev_b32 v%d, 4, v%d' % (t0, t0))
        for s in range(4):
            E('s_lshl_b32 %s, %s, 1' % (S(sT0), S(sKP + s)))
            for kk in range(4):
                E('buffer_load_dwordx4 %s, v%d, %s, %s offen offset:%d' % (V(vO + 64 + 4 * (4 * s + kk), 4), t0, S(sGW, 4), S(sT0), kk * 64))
        E(WaitV())
        for tt in range(4):
            for ks in range(16):
                acc = V(vSP + 4 * tt, 4)
                E('%s %s, %s, %s, %s' % (MF, acc, V(vO + 64 + 4 * ks, 4), Ac(16 * ks + 4 * tt, 4), acc if ks else '0'))
        E('s_lshl_b32 %s, %s, 8' % (S(sT0), S(sTB)))
        E('s_add_u32 %s, %s, %d' % (S(sT0), S(sT0), WS_G))
        E('v_and_b32 v%d, 15, v0' % t0)
        E('v_lshlrev_b32 v%d, 2, v%d' % (t0, t0))
        for tt in range(4):
            g = vSP + 4 * tt
            E('v_mul_f32 v%d, %s, v%d' % (g, S(sNL), g))
            E('v_exp_f32 v%d, v%d' % (g, g))
            E('v_add_f32 v%d, 1.0, v%d' % (g, g))
            E('v_rcp_f32 v%d, v%d' % (g, g))
            E('s_nop 0')
            E('buffer_store_dword v%d, v%d, %s, %s offen offset:%d %s' % (g, t0, S(sWS, 4), S(sT0), tt * 64, sc))


vRD = 2
vQA = 4
vXA = 5
vMK = 8
vLs = 12
vM = 16
vS = vSP
vP = vSP + 16
sNX, sD8, sD16, sCTX = 61, 62, 63, 64
NEG = f32(-1e30)
L_LO, L_HI = f32(2.0 ** -40), f32(2.0 ** 40)

def aK(par, kt, p): return 128 * par + 4 * (4 * kt + p)
def aV(par, c, ks): return 128 * par + 64 + 4 * (2 * c + ks)
def c_entry_state(par):
    return ([{('a', r) for r in range(128 * par + 64 + 4 * f, 128 * par + 68 + 4 * f)} for f in range(8, 16)], [('kv', set())] * 16)
def c_check_exit(E, par):
    ok = {('a', r) for r in range(128 * par + 96, 128 * par + 128)}
    assert all(d <= ok for d in E.lq), E.lq
    assert all(not d for _, d in E.vq)

def c_reads(par):
    return ['ds_read_b128 %s, v%d offset:%d' % (Ac(128 * par + 4 * f, 4), vRD + par, 1024 * f) for f in range(32)]

def c_dma(par, n):
    out = []
    base = sD8 if n == 8 else sD16
    for k in range(n):
        g = []
        if k % 4 == 0:
            g = ['s_add_u32 m0, %s, %d' % (S(base), 65536 * par + 1024 * k), 's_add_u32 %s, %s, %d' % (S(sSO), S(sSRC), 1024 * k)]
        out.append(g + [I('buffer_load_dwordx4 v%d, %s, %s offen offset:%d lds' % (vL16, S(sNUL, 4), S(sSO), 1024 * (k % 4)), 'kv')])
    return out

def c_softmax(q, pp, kts, safe, zero_rest=0):
    gaps = {}
    def put(g, x): gaps.setdefault(g, []).append(x)
    for k in range(8):
        kt = k >> 1
        a = vS + 2 * k
        d = vP + 8 * pp + k
        if kt < kts:
            for j in range(2):
                if safe: put(8 + 4 * k + 2 * j, 'v_sub_f32 v%d, v%d, v%d' % (a + j, a + j, vM + q))
                put(8 + 4 * k + 2 * j, 'v_exp_f32 v%d, v%d' % (a + j, a + j))
                put(13 + 4 * k, 'v_add_f32 v%d, v%d, v%d' % (vLs + q, vLs + q, a + j))
            put(11 + 4 * k, 'v_cvt_pk_bf16_f32 v%d, v%d, v%d' % (d, a, a + 1))
        elif kt < kts + zero_rest:
            put(11 + 4 * k, 'v_mov_b32 v%d, 0' % d)
    return gaps

def c_pv(q, par, pp, nks=2):
    out = []
    for c in range(8):
        for ks in range(2):
            o = V(vO + 32 * q + 4 * c, 4)
            out.append('%s %s, %s, %s, %s' % (MF, o, Ac(aV(par, c, ks), 4), V(vP + 8 * pp + 4 * ks, 4), o) if ks < nks else None)
    return out

def c_body(E, par, ndma, diag, safe, reads=True, tail=()):
    E.set_state(c_entry_state(par))
    m = [None] * 128
    first = [[] for _ in range(128)]
    valu = [[] for _ in range(128)]
    for q in range(4):
        kts = q + 1 if diag else 4
        for kt in range(kts):
            for p in range(4):
                d = V(vS + 4 * kt, 4)
                c = d if p else (V(vMK, 4) if (diag and kt == q) else '0')
                m[32 * q + 4 * kt + p] = '%s %s, %s, %s, %s' % (MF, d, Ac(aK(par, kt, p), 4), V(vQ + 16 * p + 4 * q, 4), c)
        if q == 0: pv = c_pv(3, par ^ 1, 1)
        else: pv = c_pv(q - 1, par, (q - 1) & 1, (1 if q - 1 < 2 else 2) if diag else 2)
        m[32 * q + 16:32 * q + 32] = pv
        for g, ops in c_softmax(q, q & 1, kts, safe, kts & 1).items():
            if 32 * q + g < 128: valu[32 * q + g] += ops
    for g, ops in c_softmax(3, 1, 4, safe).items():
        if g >= 32: valu[g - 32] = ops + valu[g - 32]
    first[2] += [WaitLV(None, None), 's_barrier']
    if reads:
        rd = c_reads(par ^ 1)
        pos = [3 + 4 * k for k in range(31)]
        pos.insert(24, 97)
        for g, r in zip(pos, rd): first[g].append(r)
        first[120].append(WaitL({('a', r) for r in range(128 * (par ^ 1), 128 * (par ^ 1) + 96)}))
    for k, g in enumerate(c_dma(par, ndma) if ndma else []):
        at = 5 + 4 * k
        if len(g) > 1:
            first[at - 1 if k else 0].append(g[0]); first[at - 3 if k else 1].append(g[1])
        first[at].append(g[-1])
    sl = [100 + 2 * k for k in range(10)]
    tail = list(tail)
    if ndma: tail = ['s_add_u32 %s, %s, %d' % (S(sSRC), S(sSRC), 4096 * ndma)] + tail
    for g, x in zip(sl, tail): first[g].append(x)
    assert len(tail) <= len(sl)
    for g in range(128):
        if m[g]: E(m[g])
        E(first[g]); E(valu[g])
    c_check_exit(E, par ^ 1)

def c_tail(E, par, safe):
    sm = c_softmax(3, 1, 4, safe)
    for g in sorted(sm):
        if g >= 32: E(sm[g])
    E(WaitL())
    E(c_pv(3, par, 1))

def c_rowsum(E, qs):
    t = vT
    for op in ('v_permlane32_swap_b32', 'v_permlane16_swap_b32'):
        for k, q in enumerate(qs): E('v_mov_b32 v%d, v%d' % (t + k, vLs + q))
        for k, q in enumerate(qs): E('%s v%d, v%d' % (op, t + k, vLs + q))
        for k, q in enumerate(qs): E('v_add_f32 v%d, v%d, v%d' % (vLs + q, vLs + q, t + k))
    E('s_mov_b32 %s, %s' % (S(sT0), L_LO))
    E('s_mov_b32 %s, %s' % (S(sT1), L_HI))
    for q in qs:
        E('v_cmp_nle_f32 vcc, %s, v%d' % (S(sT0), vLs + q))
        E('s_or_b64 %s, %s, vcc' % (S(sBAD, 2), S(sBAD, 2)))
        E('v_cmp_nge_f32 vcc, %s, v%d' % (S(sT1), vLs + q))
        E('s_or_b64 %s, %s, vcc' % (S(sBAD, 2), S(sBAD, 2)))
    for q in qs: E('v_rcp_f32 v%d, v%d' % (vLs + q, vLs + q))

def c_out(E, q, sc):
    for p in range(4):
        a = vO + 32 * q + 8 * p
        for r in range(8): E('v_mul_f32 v%d, v%d, v%d' % (a + r, vLs + q, a + r))
        for r in range(4): E('v_cvt_pk_bf16_f32 v%d, v%d, v%d' % (a + r, a + 2 * r, a + 2 * r + 1))
        E('s_add_u32 %s, %s, %d' % (S(sT0), S(sCTX), 4096 * p))
        E('buffer_store_dwordx4 %s, v%d, %s, %s offen offset:%d %s' % (V(a, 4), vL16, S(sWS, 4), S(sT0), 1024 * q, sc), 'st')

def c_ctx_base(E, tb):
    E('s_lshl_b32 %s, %s, 5' % (S(sCTX), S(tb)))
    E('s_add_u32 %s, %s, %s' % (S(sCTX), S(sCTX), S(sH)))
    E('s_lshl_b32 %s, %s, 14' % (S(sCTX), S(sCTX)))
    E('s_add_u32 %s, %s, %d' % (S(sCTX), S(sCTX), WS_CTX))

def c_clear(E, qs=range(4)):
    for q in qs:
        for r in range(0, 32, 2): E('v_mov_b64 %s, 0' % V(vO + 32 * q + r, 2))
def c_clear_small(E):
    for r in range(0, 4, 2): E('v_mov_b64 %s, 0' % V(vLs + r, 2))
    for r in range(0, 8, 2): E('v_mov_b64 %s, 0' % V(vP + 8 + r, 2))
    for r in (10, 11): E('v_mov_b32 v%d, 0' % (vS + r))
    for r in range(12, 16): E('v_mov_b32 v%d, %s' % (vS + r, NEG))

def c_idle(E, par, safe, sc, tail=()):
    E.set_state(c_entry_state(par))
    c_tail(E, par ^ 1, safe)
    c_rowsum(E, range(4))
    c_out(E, 0, sc)
    E(WaitLV(None, {'kv'}))
    E('s_barrier')
    for g in c_dma(par, 16): E(g)
    E('s_add_u32 %s, %s, %d' % (S(sSRC), S(sSRC), 65536))
    for r in range(0, 4, 2): E('v_mov_b64 %s, %s' % (V(vS + r, 2), V(vQ + r, 2)))
    for f in range(16):
        E('ds_read_b128 %s, v%d offset:%d' % (V(vQ + 4 * f, 4), vQA, 1024 * f))
        E('ds_write_b128 v%d, %s offset:%d' % (vQA, V(vQ + 4 * f + 4, 4) if f < 15 else V(vS, 4), 1024 * f))
    rd = c_reads(par ^ 1)
    for q in range(1, 4):
        E(rd[8 * (q - 1):8 * q])
        c_out(E, q, sc)
    E(rd[24:])
    if safe:
        for r in range(0, 4, 2): E('v_mov_b64 %s, %s' % (V(vM + r, 2), V(vM + 4 + r, 2)))
    c_clear(E)
    c_clear_small(E)
    E('s_sub_u32 %s, 15, %s' % (S(sT0), S(sI)))
    E('s_lshl_b32 %s, %s, 1' % (S(sT0), S(sT0)))
    E('s_add_u32 %s, %s, 3' % (S(sT0), S(sT0)))
    E('s_sub_u32 %s, %s, %s' % (S(sT0), S(sT0), S(sW)))
    c_ctx_base(E, sT0)
    E(tail)
    E(WaitL())
    c_check_exit(E, par ^ 1)

def c_setup(E):
    t0, t1 = vT, vT + 1
    E('v_add_u32 v%d, 0x8000, v%d' % (vRD, vL16))
    E('v_add_u32 v%d, 0x18000, v%d' % (vRD + 1, vL16))
    E('s_lshr_b32 %s, %s, 1' % (S(sT0), S(sW)))
    E('s_xor_b32 %s, %s, %s' % (S(sT0), S(sT0), S(sW)))
    E('s_and_b32 %s, %s, 1' % (S(sT0), S(sT0)))
    E('s_lshl_b32 %s, %s, 14' % (S(sT0), S(sT0)))
    E('s_add_u32 %s, %s, 0x20000' % (S(sT0), S(sT0)))
    E('v_add_u32 v%d, %s, v%d' % (vQA, S(sT0), vL16))
    E('v_lshrrev_b32 v%d, 4, v0' % t0)
    E('v_lshlrev_b32 v%d, 2, v%d' % (t0, t0))
    E('v_and_b32 v%d, 15, v0' % t1)
    E('v_sub_u32 v%d, v%d, v%d' % (t0, t1, t0))
    E('v_mov_b32 v%d, %s' % (t1, NEG))
    for r in range(4):
        E('v_cmp_gt_i32 vcc, %d, v%d' % (r, t0))
        E('v_cndmask_b32 v%d, 0, v%d, vcc' % (vMK + r, t1))
    E('s_lshl_b32 %s, %s, 20' % (S(sKVH), S(sH)))
    E('s_lshl_b32 %s, %s, 13' % (S(sD8), S(sW)))
    E('s_lshl_b32 %s, %s, 14' % (S(sD16), S(sW)))
    E('s_add_u32 %s, %s, %s' % (S(sSRC), S(sKVH), S(sD8)))
    E('s_add_u32 %s, %s, 0x8000' % (S(sD8), S(sD8)))
    E('s_mov_b32 %s, %s' % (S(sNUL), S(sWS)))
    E('s_mov_b32 %s, %s' % (S(sNUL + 1), S(sWS + 1)))
    E('s_mov_b32 %s, 0x%x' % (S(sNUL + 2), 32 * MB))
    E('s_mov_b32 %s, 0x20000' % S(sNUL + 3))
    E('s_sub_u32 %s, %s, 2' % (S(sT0), S(sW)))
    E('s_cmp_lt_u32 %s, 2' % S(sW))
    E('s_cselect_b32 %s, 2, %s' % (S(sT0), S(sT0)))
    E('s_lshl_b32 %s, %s, 1' % (S(sTI), S(sI)))
    E('s_add_u32 %s, %s, %s' % (S(sTD), S(sTI), S(sT0)))
    E('s_add_u32 %s, %s, 1' % (S(sNX), S(sTI)))
    E('s_mov_b32 %s, 0' % S(sIT))
    E('s_mov_b64 %s, 0' % S(sBAD, 2))
    c_ctx_base(E, sTB)

def c_first_dma(E):
    for par in range(2):
        for g in c_dma(par, 8): E(g)
        E('s_add_u32 %s, %s, %d' % (S(sSRC), S(sSRC), 32768))

def c_main(E, safe, sc, pre):
    L = lambda x: pre + x
    E(c_reads(0))
    E(['ds_read_b128 %s, v%d offset:%d' % (Ac(128 + 4 * f, 4), vRD, 1024 * f) for f in range(16, 32)])
    E(WaitL())
    inc = 's_add_u32 %s, %s, 1' % (S(sIT), S(sIT))
    E('s_cmp_eq_u32 %s, 0' % S(sI))
    E('s_cbranch_scc1 %s' % L('mid'))
    E('.p2align 6')
    E(L('e8') + ':')
    c_body(E, 0, 8, False, safe)
    c_body(E, 1, 8, False, safe, tail=['s_add_u32 %s, %s, 2' % (S(sIT), S(sIT)), 's_cmp_lt_u32 %s, %s' % (S(sIT), S(sTI))])
    E('s_cbranch_scc1 %s' % L('e8'))
    E(L('mid') + ':')
    E('s_sub_u32 %s, 15, %s' % (S(sT0), S(sI)))
    E('s_lshl_b32 %s, %s, 16' % (S(sT0), S(sT0)))
    E('s_add_u32 %s, %s, %s' % (S(sT0), S(sT0), S(sKVH)))
    E('s_add_u32 %s, %s, %s' % (S(sSRC), S(sT0), S(sD16)))
    E('s_cmp_eq_u32 %s, 2' % S(sW))
    E('s_cbranch_scc1 %s' % L('de'))
    E('s_branch %s' % L('e16'))
    E('.p2align 6')
    E(L('o16') + ':')
    c_body(E, 1, 16, False, safe, tail=[inc, 's_cmp_eq_u32 %s, %s' % (S(sIT), S(sTD))])
    E('s_cbranch_scc1 %s' % L('de'))
    E(L('e16') + ':')
    chk = [inc, 's_cmp_lg_u32 %s, %s' % (S(sIT), S(sNX))]
    c_body(E, 0, 16, False, safe, tail=chk)
    E('s_cbranch_scc1 %s' % L('o16'))
    E(L('disp') + ':')
    E('s_cmp_eq_u32 %s, 17' % S(sIT))
    E('s_cbranch_scc1 %s' % L('fin'))
    E('s_add_u32 %s, %s, 1' % (S(sT0), S(sTI)))
    E('s_cmp_lg_u32 %s, %s' % (S(sIT), S(sT0)))
    E('s_cbranch_scc1 %s' % L('o0'))
    E('s_and_b32 %s, %s, 1' % (S(sT0), S(sW)))
    E('s_lshl_b32 %s, %s, 15' % (S(sT0), S(sT0)))
    E('v_add_u32 v%d, %s, v%d' % (vRD, S(sT0), vL16))
    E('v_add_u32 v%d, 0x10000, v%d' % (vRD + 1, vRD))
    E('s_add_u32 %s, %s, 1' % (S(sT0), S(sI)))
    E('s_lshl_b32 %s, %s, 16' % (S(sT0), S(sT0)))
    E('s_add_u32 %s, %s, %s' % (S(sT0), S(sT0), S(sKVH)))
    E('s_add_u32 %s, %s, %s' % (S(sSRC), S(sT0), S(sD16)))
    E('s_cmp_eq_u32 %s, 7' % S(sI))
    E('s_cselect_b32 %s, 17, 15' % S(sNX))
    E('s_cselect_b32 %s, 0, %s' % (S(sNUL + 2), S(sNUL + 2)))
    E('s_cmp_lt_u32 %s, 2' % S(sW))
    E('s_cbranch_scc1 %s' % L('o16'))
    E('s_cmp_eq_u32 %s, 3' % S(sW))
    E('s_cbranch_scc1 %s' % L('do'))
    c_idle(E, 1, safe, sc, tail=[inc])
    E('s_branch %s' % L('e16'))
    E(L('de') + ':')
    c_body(E, 0, 16, True, safe, tail=chk)
    E('s_cbranch_scc1 %s' % L('o16'))
    E('s_branch %s' % L('disp'))
    E(L('do') + ':')
    c_body(E, 1, 16, True, safe, tail=[inc])
    c_idle(E, 0, safe, sc, tail=chk)
    E('s_cbranch_scc1 %s' % L('o16'))
    E('s_branch %s' % L('disp'))
    E('.p2align 6')
    E(L('o0') + ':')
    c_body(E, 1, 0, False, safe)
    c_body(E, 0, 0, False, safe, reads=False)
    E(L('fin') + ':')
    E.set_state(c_entry_state(1))
    c_tail(E, 0, safe)
    E('s_lshl_b32 %s, %s, 15' % (S(sT0), S(sW)))
    E('v_add_u32 v%d, %s, v%d' % (vXA, S(sT0), vL16))
    E('s_sub_u32 %s, 3, %s' % (S(sT0), S(sW)))
    E('s_lshl_b32 %s, %s, 15' % (S(sT0), S(sT0)))
    E('v_add_u32 v%d, %s, v%d' % (vRD, S(sT0), vL16))
    E(WaitLV(None, None))
    E('s_barrier')
    E('s_cmp_ge_u32 %s, 2' % S(sW))
    E('s_cbranch_scc1 %s' % L('mb'))
    for keep, lab in (((0, 1), None), ((2, 3), L('mb'))):
        if lab: E(lab + ':')
        E.set_state(([], []))
        send = (2, 3) if keep == (0, 1) else (0, 1)
        for f in range(16): E('ds_write_b128 v%d, %s offset:%d' % (vXA, V(vO + 32 * send[0] + 4 * f, 4), 1024 * f))
        E('ds_write_b64 v%d, %s offset:16384' % (vXA, V(vLs + send[0], 2)))
        E(WaitL())
        E('s_barrier')
        E('ds_read_b64 %s, v%d offset:16384' % (V(vLs + send[0], 2), vRD))
        for f in range(16): E('ds_read_b128 %s, v%d offset:%d' % (V(vO + 32 * send[0] + 4 * f, 4), vRD, 1024 * f))
        for k in range(2): E('v_add_f32 v%d, v%d, v%d' % (vLs + keep[k], vLs + keep[k], vLs + send[k]))
        c_rowsum(E, keep)
        for r in range(64): E('v_add_f32 v%d, v%d, v%d' % (vO + 32 * keep[0] + r, vO + 32 * keep[0] + r, vO + 32 * send[0] + r))
        for q in keep: c_out(E, q, sc)
        if not lab: E('s_branch %s' % L('done'))
    E(L('done') + ':')


def kernel_c():
    E = new_em('c')
    emit_setup(E, {sWS, sDBG})
    stamp(E, 20)
    code_prefetch(E, 'c', '(L_end_c-c_kernel)/1024-2')
    emit_ids(E)
    E('s_waitcnt lgkmcnt(0)')
    c_setup(E)
    E('s_lshl_b32 %s, s2, 16' % S(sT0))
    E('s_lshl_b32 %s, %s, 14' % (S(sT1), S(sW)))
    E('s_add_u32 %s, %s, %s' % (S(sT0), S(sT0), S(sT1)))
    E('s_add_u32 %s, %s, %d' % (S(sT0), S(sT0), WS_Q))
    for f in range(16):
        if f and f % 4 == 0: E('s_add_u32 %s, %s, 4096' % (S(sT0), S(sT0)))
        E('buffer_load_dwordx4 %s, v%d, %s, %s offen offset:%d' % (V(vQ + 4 * f, 4), vL16, S(sWS, 4), S(sT0), (f % 4) * 1024), 'q')
    c_first_dma(E)
    c_clear(E); c_clear_small(E)
    E(WaitV({'q'}))
    E('s_cmp_ge_u32 %s, 2' % S(sW))
    E('s_cbranch_scc1 L_c_nostash')
    for f in range(16): E('ds_write_b128 v%d, %s offset:%d' % (vQA, V(vQ + 4 * f, 4), 1024 * f))
    E('L_c_nostash:')
    E('s_waitcnt vmcnt(8) lgkmcnt(0)')
    E('s_barrier')
    stamp(E, 21)
    c_main(E, False, '', 'L_c_')
    stamp(E, 22)
    E('s_waitcnt vmcnt(0)')
    stamp(E, 23)
    stamp_flush(E, 20, 24)
    E(E.endlab + ':')
    E('s_endpgm')
    return E


vDV = 2
vDR = 6
vG = 12
vDX, vDY, vDZ = 20, 21, 22
sDT, sDC = 59, 60
sDA, sDB, sDM = 61, 62, 63
sDA2, sDB2 = 72, 73

def d_setup(E):
    t0, t1, t2 = vT, vT + 1, vT + 2
    E('s_and_b32 %s, s2, 7' % S(sT0))
    E('s_lshr_b32 %s, s2, 3' % S(sT1))
    E('s_and_b32 %s, %s, 3' % (S(sT2), S(sT1)))
    E('s_lshr_b32 %s, %s, 2' % (S(sDC), S(sT1)))
    E('s_lshl_b32 %s, %s, 2' % (S(sDT), S(sT0)))
    E('s_add_u32 %s, %s, %s' % (S(sDT), S(sDT), S(sT2)))
    E('s_lshl_b32 %s, %s, 15' % (S(sDM), S(sW)))
    E('s_mul_i32 %s, %s, 56' % (S(sDA), S(sDT)))
    E('s_mul_i32 %s, %s, 14' % (S(sT0), S(sW)))
    E('s_add_u32 %s, %s, %s' % (S(sDA), S(sDA), S(sT0)))
    E('s_lshl_b32 %s, %s, 12' % (S(sDA), S(sDA)))
    E('s_add_u32 %s, %s, %d' % (S(sDA), S(sDA), WS_H))
    E('s_lshl_b32 %s, %s, 15' % (S(sDB), S(sT0)))
    E('s_lshl_b32 %s, %s, 7' % (S(sT1), S(sDC)))
    E('s_add_u32 %s, %s, %s' % (S(sDB), S(sDB), S(sT1)))
    E('s_lshl_b32 %s, %s, 2' % (S(sDA2), S(sDT)))
    E('s_add_u32 %s, %s, %s' % (S(sDA2), S(sDA2), S(sW)))
    E('s_lshl_b32 %s, %s, 17' % (S(sDA2), S(sDA2)))
    E('s_add_u32 %s, %s, %d' % (S(sDA2), S(sDA2), WS_CTX))
    E('s_lshl_b32 %s, %s, 20' % (S(sDB2), S(sW)))
    E('s_add_u32 %s, %s, %s' % (S(sDB2), S(sDB2), S(sT1)))
    E('v_lshrrev_b32 v%d, 3, v0' % t0)
    E('v_bfe_u32 v%d, v0, 1, 2' % t1)
    E('v_lshrrev_b32 v%d, 4, v0' % t2)
    E('v_xor_b32 v%d, v%d, v%d' % (t1, t1, t2))
    E('v_lshlrev_b32 v%d, 5, v%d' % (t1, t1))
    E('v_lshl_add_u32 v%d, v%d, 10, v%d' % (t0, t0, t1))
    E('v_and_b32 v%d, 1, v0' % t1)
    E('v_lshl_add_u32 v%d, v%d, 4, v%d' % (vDV, t1, t0))
    for q in range(1, 4): E('v_add_u32 v%d, %d, v%d' % (vDV + q, 7168 * q, vDV))
    E('v_lshrrev_b32 v%d, 2, v0' % t0)
    E('v_lshlrev_b32 v%d, 7, v%d' % (t0, t0))
    E('v_and_b32 v%d, 3, v0' % t1)
    E('v_lshl_add_u32 v%d, v%d, 3, v%d' % (t0, t1, t0))
    E('v_bfe_u32 v%d, v0, 3, 2' % t1)
    E('v_lshl_add_u32 v%d, v%d, 5, v%d' % (t0, t1, t0))
    E('v_add_u32 v%d, %s, v%d' % (vDR, S(sDM), t0))
    for c in range(1, 4): E('v_xor_b32 v%d, %d, v%d' % (vDR + c, 32 * c, vDR))


def d_main(E, sc=''):
    NF, NC = 14, 32
    N = NF + NC
    D = 7
    accA, accB = vO, vO + 64
    def loads(n):
        f = n < NF
        sa, sb = (sDA, sDB) if f else (sDA2, sDB2)
        srd = sWD if f else sWO
        slot = n % 8
        g = ['s_add_u32 m0, %s, %d' % (S(sDM), 4096 * slot)]
        for tt in range(4):
            g.append(I('buffer_load_dwordx4 %s, v%d, %s, %s offen offset:%d %s' % (Ac(16 * slot + 4 * tt, 4), vL16, S(sWS, 4), S(sa), 1024 * tt, sc), ('A', n)))
        for q in range(4):
            g.append(I('buffer_load_dwordx4 v%d, %s, %s offen offset:%d lds' % (vDV + q, S(srd, 4), S(sb), 1024 * q), ('B', n)))
        g += ['s_add_u32 %s, %s, 4096' % (S(sa), S(sa)), 's_add_u32 %s, %s, 32768' % (S(sb), S(sb))]
        return g
    def reads(n):
        return ['ds_read_b64_tr_b16 %s, v%d offset:%d' % (V(vSP + 16 * (n & 1) + 4 * c + 2 * jh, 2), vDR + c, 4096 * (n % 8) + 2048 * jh)
                for c in range(4) for jh in range(2)]
    E('s_lshl_b32 %s, %s, 8' % (S(sT0), S(sDT)))
    E('s_add_u32 %s, %s, %d' % (S(sT0), S(sT0), WS_G))
    E('v_and_b32 v%d, 15, v0' % vDX)
    E('v_lshlrev_b32 v%d, 2, v%d' % (vDY, vDX))
    for tt in range(4): E('buffer_load_dword v%d, v%d, %s, %s offen offset:%d %s' % (vG + tt, vDY, S(sWS, 4), S(sT0), 64 * tt, sc), 'g')
    for n in range(D): E(loads(n))
    E(WaitV({('B', 0)}))
    E(reads(0))
    for tt in range(4): E('v_sub_f32 v%d, 1.0, v%d' % (vG + 4 + tt, vG + tt))
    E(WaitL())
    mains = []
    for n in range(N):
        acc = accB if n < NF else accA
        for c in range(4):
            for tt in range(4):
                d = V(acc + 16 * c + 4 * tt, 4)
                mains.append('%s %s, %s, %s, %s' % (MF, d, V(vSP + 16 * (n & 1) + 4 * c, 4), Ac(16 * (n % 8) + 4 * tt, 4), '0' if n in (0, NF) else d))
    st_r = []; st_l = []; st_v = []
    for n in range(N):
        if n + D < N:
            for k, x in enumerate(loads(n + D)): st_l.append(Op(x, 16 * n, min(16 * n + k, 16 * n + 9)))
        if n + 1 < N:
            st_r.append(Op(WaitV({('B', n + 1)}), 16 * n + 9, 16 * n + 9))
            for k, x in enumerate(reads(n + 1)): st_r.append(Op(x, 16 * n + 9, 16 * n + 9 + k // 2))
            st_r.append(Op(WaitL(), 16 * n + 15, 16 * n + 15))
    for c in range(4):
        for tt in range(4):
            for r in range(4):
                a = accB + 16 * c + 4 * tt + r
                st_v.append(Op('v_mul_f32 v%d, v%d, v%d' % (a, vG + 4 + tt, a), 16 * NF + 8))
    schedule(E, mains, [st_l, st_r, st_v])
    E('s_lshl_b32 %s, %s, 12' % (S(sT0), S(sW)))
    E('v_add_u32 v%d, %s, v%d' % (vDY, S(sT0), vL16))
    E('v_lshrrev_b32 v%d, 4, v0' % vDZ)
    E('v_lshlrev_b32 v%d, 10, v%d' % (vT, vDZ))
    E('v_lshl_add_u32 v%d, v%d, 4, v%d' % (vT, vDX, vT))
    E('s_lshl_b32 %s, %s, 14' % (S(sT0), S(sW)))
    E('v_add_u32 v%d, %s, v%d' % (vT, S(sT0), vT))
    E('s_barrier')
    for c in range(4):
        for tt in range(4):
            a = accA + 16 * c + 4 * tt
            for r in range(4): E('v_fma_f32 v%d, v%d, v%d, v%d' % (a + r, vG + tt, a + r, a + 64 + r))
            E('ds_write_b128 v%d, %s offset:%d' % (vDY, V(a, 4), 16384 * tt + 1024 * c))
    E('s_lshl_b32 %s, %s, 2' % (S(sT0), S(sDT)))
    E('s_add_u32 %s, %s, %s' % (S(sT0), S(sT0), S(sW)))
    E('s_lshl_b32 %s, %s, 14' % (S(sT0), S(sT0)))
    E('s_lshl_b32 %s, %s, 7' % (S(sT1), S(sDC)))
    E('s_add_u32 %s, %s, %s' % (S(sT0), S(sT0), S(sT1)))
    E('v_lshlrev_b32 v%d, 5, v%d' % (vDZ, vDZ))
    E('v_lshl_add_u32 v%d, v%d, 10, v%d' % (vDZ, vDX, vDZ))
    E(WaitL())
    E('s_barrier')
    for src in range(4):
        for j in range(4): E('ds_read_b128 %s, v%d offset:%d' % (V(vQ + 16 * src + 4 * j, 4), vT, 4096 * src + 256 * j))
    E(WaitL({('v', vQ + 31)}))
    for r in range(16): E('v_add_f32 v%d, v%d, v%d' % (vQ + r, vQ + r, vQ + 16 + r))
    E(WaitL())
    for r in range(16): E('v_add_f32 v%d, v%d, v%d' % (vQ + 32 + r, vQ + 32 + r, vQ + 48 + r))
    for r in range(16): E('v_add_f32 v%d, v%d, v%d' % (vQ + r, vQ + r, vQ + 32 + r))
    for r in range(8): E('v_cvt_pk_bf16_f32 v%d, v%d, v%d' % (vQ + r, vQ + 2 * r, vQ + 2 * r + 1))
    for k in range(2): E('buffer_store_dwordx4 %s, v%d, %s, %s offen offset:%d' % (V(vQ + 4 * k, 4), vDZ, S(sOUT, 4), S(sT0), 16 * k))


def kernel_d():
    E = new_em('d')
    emit_setup(E, {sWS, sDBG, sWO, sWD, sOUT})
    stamp(E, 24)
    code_prefetch(E, 'd', '(L_end_d-d_kernel)/1024-2')
    d_setup(E)
    E('s_waitcnt lgkmcnt(0)')
    d_main(E)
    stamp(E, 25)
    E('s_waitcnt vmcnt(0)')
    stamp(E, 26)
    stamp_flush(E, 24, 27)
    E(E.endlab + ':')
    E('s_endpgm')
    return E


def q_dump(E):
    E('s_lshl_b32 %s, s2, 16' % S(sT0))
    E('s_lshl_b32 %s, %s, 14' % (S(sT1), S(sW)))
    E('s_add_u32 %s, %s, %s' % (S(sT0), S(sT0), S(sT1)))
    E('s_add_u32 %s, %s, %d' % (S(sT0), S(sT0), WS_Q))
    for f in range(16):
        if f and f % 4 == 0: E('s_add_u32 %s, %s, 4096' % (S(sT0), S(sT0)))
        E('buffer_store_dwordx4 %s, v%d, %s, %s offen offset:%d' % (V(vQ + 4 * f, 4), vL16, S(sWS, 4), S(sT0), (f % 4) * 1024))


def new_em(name):
    E = Em(); E.notes = []; E.endlab = 'L_end_' + name
    return E


STAMPS = False
WS_T = 75 * MB
def stamp_ops(k):
    if not STAMPS: return []
    return ['s_memtime s[100:101]', 's_memrealtime s[86:87]', 's_waitcnt lgkmcnt(0)',
            'v_writelane_b32 v30, s100, %d' % k, 'v_writelane_b32 v31, s86, %d' % k]
def stamp(E, k):
    E(stamp_ops(k))
def stamp_flush(E, k0, k1):
    if not STAMPS: return
    E('s_lshl_b32 s3, s2, 2')
    E('s_add_u32 s3, s3, %s' % S(sW))
    E('s_lshl_b32 s3, s3, 9')
    E('s_add_u32 s3, s3, %d' % WS_T)
    E('v_lshlrev_b32 v29, 3, v0')
    E('s_mov_b32 exec_lo, 0x%x' % ((((1 << k1) - 1) & ~((1 << k0) - 1)) & 0xffffffff))
    E('s_mov_b32 exec_hi, 0x%x' % ((((1 << k1) - 1) & ~((1 << k0) - 1)) >> 32))
    E('buffer_store_dwordx2 v[30:31], v29, %s, s3 offen' % S(sWS, 4), 'stamp')
    E('s_mov_b64 exec, -1')


def kernel_ab(dev=False):
    E = new_em('ab')
    emit_setup(E, {sX, sC, sWQ, sWK, sWV, sWG, sWU, sGW, sWS, sDBG})
    stamp(E, 0)
    code_prefetch(E, 'ab', '(L_end_ab-ab_kernel)/1024-2')
    emit_ids(E)
    ab_setup(E)
    E('s_waitcnt lgkmcnt(0)')
    E('s_cmp_lg_u32 %s, 0' % S(sBAD))
    E('s_cbranch_scc1 L_ab_noffn')
    st = E.state()
    ab_stream(E, True)
    E('s_branch L_ab_join')
    E.set_state(st)
    E('L_ab_noffn:')
    ab_stream(E, False)
    E('L_ab_join:')
    E.set_state(([], []))
    stamp(E, 17)
    q_dump(E)
    E('s_waitcnt vmcnt(0)')
    stamp(E, 18)
    stamp(E, 19)
    stamp_flush(E, 0, 20)
    E(E.endlab + ':')
    E('s_endpgm')
    return E


def finish(kernels, launches):
    txt = []
    hdr = open('cdna_kernels/%s.s.ref' % NAME).read().split('\n')
    for l in hdr:
        if l.startswith(';') and '@launch' not in l and 'Override launch' not in l and 'grid=ceil' not in l: txt.append(l)
        if not l.startswith(';'): break
    for l in launches: txt.append(l)
    txt.append('.amdgcn_target "amdgcn-amd-amdhsa--gfx950"')
    txt.append('.text')
    for name, E in kernels:
        ins, n = hazard_pass(E.out, verbose=VERBOSE)
        sys.stderr.write('%s: %d instructions, %d nops inserted, %d auto waits; %s\n' % (name, len(ins), n, len(E.auto_waits), '; '.join(E.notes)))
        if VERBOSE:
            for w in E.auto_waits: sys.stderr.write('   auto wait before %s\n' % (w,))
        txt.append('.globl %s\n.p2align 8\n.type %s,@function\n%s:' % (name, name, name))
        txt.append(render(ins))
    txt.append('.section .rodata,"a"')
    for name, E in kernels:
        txt.append('.p2align 6\n.amdhsa_kernel %s\n  .amdhsa_next_free_vgpr 512\n  .amdhsa_next_free_sgpr 102\n'
                   '  .amdhsa_accum_offset 256\n  .amdhsa_group_segment_fixed_size 0\n  .amdhsa_kernarg_size 112\n'
                   '  .amdhsa_user_sgpr_count 2\n  .amdhsa_user_sgpr_kernarg_segment_ptr 1\n'
                   '  .amdhsa_system_sgpr_workgroup_id_x 1\n  .amdhsa_float_denorm_mode_32 3\n.end_amdhsa_kernel' % name)
    return '\n'.join(txt) + '\n'


VERBOSE = False
if __name__ == '__main__':
    VERBOSE = '-v' in sys.argv
    STAMPS = '-s' in sys.argv
    for a in sys.argv[2:]:
        if '=' in a:
            k, v = a.split('='); OPT[k] = float(v) if '.' in v else int(v)
    ks = [('ab_kernel', kernel_ab()), ('c_kernel', kernel_c()), ('d_kernel', kernel_d())]
    la = ['; @launch kernel=%s grid=(256,1,1) block=(256,1,1) lds=163840' % n for n, _ in ks]
    open(sys.argv[1], 'w').write(finish(ks, la))
```

```python
import re

TRANS = ('v_exp_f32', 'v_log_f32', 'v_rcp_f32', 'v_rsq_f32', 'v_sqrt_f32', 'v_sin_f32', 'v_cos_f32')
_REG = re.compile(r'^(-|\|)?(abs\()?([vas])(?:(\d+)|\[(\d+):(\d+)\])[)|]?$')


def R(p, a, n=1):
    return '%s%d' % (p, a) if n == 1 else '%s[%d:%d]' % (p, a, a + n - 1)
def V(a, n=1): return R('v', a, n)
def Ac(a, n=1): return R('a', a, n)
def S(a, n=1): return R('s', a, n)


def regs_of(tok):
    tok = tok.strip()
    if tok == 'vcc': return {('s', 'vcc')}
    if tok == 'exec': return {('s', 'exec')}
    if tok == 'm0': return {('s', 'm0')}
    m = _REG.match(tok)
    if not m: return set()
    p = m.group(3)
    if m.group(4) is not None:
        return {(p, int(m.group(4)))}
    return {(p, i) for i in range(int(m.group(5)), int(m.group(6)) + 1)}


class I:
    __slots__ = ('text', 'kind', 'rd', 'wr', 'op', 'srcC', 'srcAB', 'data', 'tag', 'target')

    def __init__(self, text, tag=None):
        self.text = text = text.strip()
        self.tag = tag
        self.rd = set(); self.wr = set(); self.srcC = set(); self.srcAB = set(); self.data = set()
        self.target = None
        if text.endswith(':'):
            self.kind = 'label'; self.op = text[:-1]; return
        if text.startswith('.') or text.startswith(';'):
            self.kind = 'dir'; self.op = text; return
        sp = text.split(None, 1)
        op = self.op = sp[0]
        rest = sp[1] if len(sp) > 1 else ''
        toks = [t.strip() for t in rest.split(',')] if rest else []
        mods = ''
        if toks:
            l = toks[-1].split(None, 1)
            toks[-1] = l[0]
            mods = l[1] if len(l) > 1 else ''
        rs = [regs_of(t) for t in toks]
        U = lambda xs: set().union(*xs) if xs else set()
        if op.startswith('v_mfma'):
            self.kind = 'mfma'
            self.wr = rs[0]; self.srcAB = rs[1] | rs[2]; self.srcC = rs[3]; self.rd = self.srcAB | self.srcC
        elif op.startswith('v_'):
            self.kind = 'trans' if op.replace('_e32', '').replace('_e64', '') in TRANS else 'valu'
            if op.startswith('v_permlane') and 'swap' in op:
                self.wr = rs[0] | rs[1]; self.rd = rs[0] | rs[1]
            elif op.startswith('v_cmpx'):
                raise ValueError('no cmpx')
            elif op.startswith(('v_add_co', 'v_sub_co', 'v_addc_co', 'v_subb_co')):
                self.wr = rs[0] | rs[1]; self.rd = U(rs[2:])
            else:
                self.wr = rs[0]; self.rd = U(rs[1:])
                if op.startswith(('v_fmac', 'v_dot2c', 'v_writelane')) or 'dpp' in op or 'row_' in mods or 'quad_perm' in mods:
                    self.rd |= rs[0]
        elif op.startswith('ds_read') or op.startswith('ds_bpermute') or op.startswith('ds_swizzle'):
            self.kind = 'ds'; self.wr = rs[0]; self.rd = U(rs[1:])
        elif op.startswith('ds_'):
            self.kind = 'ds'; self.rd = U(rs)
            if '_rtn' in op: self.wr = rs[0]; self.rd = U(rs[1:])
        elif op.startswith('buffer_load'):
            if re.search(r'\blds\b', mods):
                self.kind = 'dma'; self.rd = U(rs) | {('s', 'm0')}
            else:
                self.kind = 'vload'; self.wr = rs[0]; self.rd = U(rs[1:])
        elif op.startswith('buffer_store'):
            self.kind = 'vstore'; self.rd = U(rs); self.data = rs[0]
        elif op.startswith('buffer_atomic'):
            self.kind = 'vstore'; self.rd = U(rs); self.data = rs[0]
            if 'sc0' in mods: self.kind = 'vload'; self.wr = rs[0]
        elif op in ('buffer_inv', 'buffer_wbl2'):
            self.kind = 'vstore'
        elif op.startswith('global_load'):
            self.kind = 'vload'; self.wr = rs[0]; self.rd = U(rs[1:])
        elif op.startswith(('s_load', 's_memtime', 's_memrealtime')):
            self.kind = 'smem'; self.wr = rs[0]; self.rd = U(rs[1:])
        elif op == 's_waitcnt':
            self.kind = 'wait'
        elif op == 's_nop':
            self.kind = 'nop'
        elif op == 's_barrier':
            self.kind = 'barrier'
        elif op in ('s_endpgm',):
            self.kind = 'end'
        elif op.startswith(('s_branch', 's_cbranch')):
            self.kind = 'branch'; self.target = toks[0]
            if 'vcc' in op: self.rd = {('s', 'vcc')}
        elif op.startswith('s_'):
            self.kind = 'salu'
            if op.startswith(('s_cmp', 's_bitcmp', 's_setprio', 's_sleep')):
                self.rd = U(rs)
            else:
                self.wr = rs[0]; self.rd = U(rs[1:])
                if 'saveexec' in op: self.wr = self.wr | {('s', 'exec')}
                if op.startswith(('s_addk', 's_mulk')): self.rd |= rs[0]
        else:
            raise ValueError('unknown instruction: ' + text)

    def states(self):
        if self.kind in ('label', 'dir'): return 0
        if self.kind == 'nop': return int(self.text.split()[1], 0) + 1
        return 1


class WaitL:
    kind = 'wait'
    def __init__(self, regs=None): self.regs = regs
class WaitV:
    kind = 'wait'
    def __init__(self, tags=None, regs=None): self.tags = tags; self.regs = regs
class WaitLV:
    kind = 'wait'
    def __init__(self, lregs=None, tags=None): self.lregs = lregs; self.tags = tags


class Em:
    def __init__(self):
        self.out = []
        self.lq = []
        self.vq = []
        self.smem = set()
        self.auto_waits = []
        self.nlab = 0

    def lab(self, base):
        self.nlab += 1
        return '%s_%d' % (base, self.nlab)

    def state(self): return (list(self.lq), list(self.vq))
    def set_state(self, st): self.lq = list(st[0]); self.vq = list(st[1])

    def _lcount(self, regs):
        if regs is None: return 0 if self.lq else None
        last = -1
        for i, d in enumerate(self.lq):
            if d & regs: last = i
        return None if last < 0 else min(len(self.lq) - 1 - last, 15)

    def _vcount(self, tags, regs=None):
        if tags is None and regs is None: return 0 if self.vq else None
        last = -1
        for i, (t, d) in enumerate(self.vq):
            if (tags is not None and t in tags) or (regs is not None and d & regs): last = i
        return None if last < 0 else min(len(self.vq) - 1 - last, 63)

    def _emit_wait(self, lc, vc):
        parts = []
        if vc is not None:
            parts.append('vmcnt(%d)' % vc); self.vq = self.vq[len(self.vq) - vc:] if vc else []
        if lc is not None:
            parts.append('lgkmcnt(%d)' % lc); self.lq = self.lq[len(self.lq) - lc:] if lc else []
            if lc == 0: self.smem = set()
        if parts: self.out.append(I('s_waitcnt ' + ' '.join(parts)))
        return bool(parts)

    def raw(self, text):
        self.out.append(I(text))

    def __call__(self, x, tag=None):
        if isinstance(x, (list, tuple)):
            for y in x: self(y)
            return
        if isinstance(x, WaitL): self._emit_wait(self._lcount(x.regs), None); return
        if isinstance(x, WaitV): self._emit_wait(None, self._vcount(x.tags, x.regs)); return
        if isinstance(x, WaitLV): self._emit_wait(self._lcount(x.lregs), self._vcount(x.tags)); return
        if isinstance(x, str):
            lines = [l for l in x.split('\n') if l.strip()]
            if len(lines) != 1:
                for l in lines: self(l, tag)
                return
            x = I(lines[0], tag)
        ins = x
        if ins.kind == 'wait':
            m = re.search(r'vmcnt\((\d+)\)', ins.text)
            if m:
                n = int(m.group(1)); self.vq = self.vq[max(len(self.vq) - n, 0):] if n else []
            m = re.search(r'lgkmcnt\((\d+)\)', ins.text)
            if m:
                n = int(m.group(1)); self.lq = self.lq[max(len(self.lq) - n, 0):] if n else []
                if n == 0: self.smem = set()
            self.out.append(ins); return
        touched = ins.rd | ins.wr
        if touched:
            if touched & self.smem:
                self.out.append(I('s_waitcnt lgkmcnt(0)')); self.lq = []; self.smem = set()
                self.auto_waits.append(('smem', ins.text))
            lc = self._lcount(touched); vc = self._vcount(None, touched)
            if lc is not None and self.smem: lc = 0
            if lc is not None or vc is not None:
                self._emit_wait(lc, vc)
                self.auto_waits.append((len(self.out), ins.text))
        self.out.append(ins)
        if ins.kind == 'ds': self.lq.append(set(ins.wr))
        elif ins.kind in ('dma', 'vload', 'vstore'): self.vq.append((ins.tag, set() if ins.tag == 'pfx' else set(ins.wr)))
        elif ins.kind == 'smem': self.smem |= ins.wr; self.lq.append(set())


class Op:
    __slots__ = ('x', 'lo', 'hi', 'kind', 'glue')
    def __init__(self, x, lo=None, hi=None, tag=None, glue=False):
        if isinstance(x, str): x = I(x, tag)
        self.x = x; self.lo = lo; self.hi = hi; self.glue = glue
        self.kind = 'multi' if isinstance(x, list) else x.kind
        if self.kind == 'ds' and x.op.startswith('ds_write'): self.kind = 'vstore'


COST = {'salu': 4, 'wait': 4, 'nop': 4, 'ds': 8, 'dma': 12, 'vload': 12, 'vstore': 12, 'valu': 4, 'trans': 8,
        'barrier': 4, 'branch': 4, 'smem': 4, 'multi': 12}


def short(out, c):
    dist = 0
    for p in reversed(out[-14:]):
        if p.kind in ('label', 'dir'): continue
        if _need(p, c) > dist: return True
        dist += p.states()
    return False


def schedule(em, mains, streams, G=16, report=None, prio=None):
    n = len(mains)
    heads = [0] * len(streams)
    eff = []
    for st in streams:
        e = [0] * len(st); cur = n - 1
        for i in range(len(st) - 1, -1, -1):
            if st[i].hi is not None: cur = min(cur, st[i].hi)
            e[i] = cur
        eff.append(e)
    over = 0
    for g in range(-1, n):
        if g >= 0: em(mains[g])
        t = 4; prev = 'mfma'
        budget = G if g >= 0 else 0
        while True:
            best = None
            for si, st in enumerate(streams):
                h = heads[si]
                if h >= len(st): continue
                op = st[h]
                forced = eff[si][h] <= g
                if not forced and (g < 0 or (op.lo is not None and op.lo > g)): continue
                k = op.kind
                if k in ('valu', 'trans'): start = max(t, 8)
                elif k in ('ds', 'dma', 'vload', 'vstore') and prev in ('valu', 'trans'): start = t + 4
                else: start = t
                end = start + COST[k]
                if not forced and end > budget: continue
                if not forced and isinstance(op.x, I) and short(em.out, op.x): continue
                mem = k in ('ds', 'dma', 'vload', 'vstore')
                if t == 4: cls = 0 if mem else (1 if k not in ('valu', 'trans') else 2)
                else: cls = 0
                key = (0 if forced else 1, cls, prio.get(si, 5) if prio else 0, eff[si][h], si)
                if best is None or key < best[0]: best = (key, si, end, k)
            if best is None: break
            _, si, end, k = best
            op = streams[si][heads[si]]
            assert op.lo is None or op.lo <= g or g == n - 1, 'forced before earliest gap: %s lo %d gap %d' % (getattr(op.x, 'text', op.x), op.lo, g)
            n0 = len(em.out)
            em(op.x)
            heads[si] += 1
            if len(em.out) > n0:
                t = end; prev = k
        if g >= 0 and t > G: over += t - G
    for si, st in enumerate(streams):
        assert heads[si] == len(st), 'unscheduled ops in stream %d' % si
    if report is not None: report.append(over)
    return over


def _need(p, c):
    need = 0
    pv = p.kind in ('valu', 'trans'); cv = c.kind in ('valu', 'trans')
    vec = lambda s: {r for r in s if r[0] in 'va'}
    sca = lambda s: {r for r in s if r[0] == 's'}
    if pv:
        w = vec(p.wr)
        if c.kind == 'mfma' and w & c.rd: need = max(need, 2)
        if cv and w & c.rd:
            if p.kind == 'trans' and c.kind != 'trans': need = max(need, 1)
            if c.op.startswith(('v_readlane', 'v_readfirstlane')): need = max(need, 1)
            if c.op.startswith('v_permlane') or 'dpp' in c.text or 'row_' in c.text or 'quad_perm' in c.text: need = max(need, 2)
        ws = sca(p.wr)
        if ws:
            if cv and ws & c.rd: need = max(need, 4 if c.op.startswith(('v_readlane', 'v_writelane')) else 2)
            if c.kind in ('dma', 'vload', 'vstore') and ws & c.rd: need = max(need, 5)
            if c.kind in ('salu', 'branch', 'smem') and ws & c.rd: need = max(need, 4)
    if p.kind == 'mfma':
        big = '32x32' in p.op
        d = p.wr
        if c.kind == 'mfma':
            if d & c.srcAB: need = max(need, 12 if big else 8)
            if d & c.srcC and d != c.srcC: need = max(need, 10 if big else 6)
            if d & c.wr and d != c.wr: need = max(need, 10 if big else 6)
        elif cv or c.kind in ('ds', 'dma', 'vload', 'vstore'):
            if d & (c.rd | c.wr): need = max(need, 12 if big else 8)
        if cv and p.srcC & c.wr: need = max(need, 7 if big else 3)
    if p.kind == 'salu' and ('s', 'm0') in p.wr and c.kind == 'dma': need = max(need, 1)
    if p.kind == 'vstore' and len(p.data) >= 3 and p.data & c.wr: need = max(need, 2 if cv else 1)
    if p.kind == 'salu' and ('s', 'exec') in p.wr and False: pass
    return need


def hazard_pass(ins, verbose=False):
    MAXD = 12
    out = list(ins)
    inserted = 0
    changed = True
    while changed:
        changed = False
        labels = {x.op: i for i, x in enumerate(out) if x.kind == 'label'}
        jumps = {}
        for i, x in enumerate(out):
            if x.kind == 'branch': jumps.setdefault(x.target, []).append(i)
        i = 0
        fix = []
        for i, c in enumerate(out):
            if c.kind in ('label', 'dir', 'nop', 'wait', 'barrier', 'end'): continue
            worst = 0; why = None
            stack = [(i - 1, 0)]
            seen = set()
            while stack:
                j, dist = stack.pop()
                while j >= 0 and dist < MAXD:
                    if (j, dist) in seen: break
                    seen.add((j, dist))
                    p = out[j]
                    if p.kind == 'label':
                        for b in jumps.get(p.op, []): stack.append((b, dist))
                        k = j - 1
                        while k >= 0 and out[k].kind in ('dir',): k -= 1
                        if k >= 0 and (out[k].kind == 'end' or out[k].op == 's_branch'): break
                    elif p.kind != 'dir':
                        nd = _need(p, c)
                        if nd - dist > worst: worst = nd - dist; why = p
                        dist += p.states()
                    j -= 1
            if worst > 0: fix.append((i, worst, why))
        last = -100; off = 0
        for (i, w, why) in fix:
            if i - last < MAXD + 2: changed = True; continue
            if verbose: print('nop %d before [%s] due to [%s]' % (w, out[i + off].text, why.text))
            out.insert(i + off, I('s_nop %d' % (w - 1)))
            off += 1; last = i; inserted += 1; changed = True
    return out, inserted


MACROS = r"""
.macro mva d, a, b
v_mfma_f32_16x16x32_bf16 v[\d:\d+3], v[\a:\a+3], a[\b:\b+3], v[\d:\d+3]
.endm
.macro mav d, a, b
v_mfma_f32_16x16x32_bf16 v[\d:\d+3], a[\a:\a+3], v[\b:\b+3], v[\d:\d+3]
.endm
.macro maa d, a, b
v_mfma_f32_16x16x32_bf16 v[\d:\d+3], a[\a:\a+3], a[\b:\b+3], v[\d:\d+3]
.endm
.macro mvv d, a, b
v_mfma_f32_16x16x32_bf16 v[\d:\d+3], v[\a:\a+3], v[\b:\b+3], v[\d:\d+3]
.endm
.macro mva0 d, a, b
v_mfma_f32_16x16x32_bf16 v[\d:\d+3], v[\a:\a+3], a[\b:\b+3], 0
.endm
.macro mav0 d, a, b
v_mfma_f32_16x16x32_bf16 v[\d:\d+3], a[\a:\a+3], v[\b:\b+3], 0
.endm
.macro maa0 d, a, b
v_mfma_f32_16x16x32_bf16 v[\d:\d+3], a[\a:\a+3], a[\b:\b+3], 0
.endm
.macro mvv0 d, a, b
v_mfma_f32_16x16x32_bf16 v[\d:\d+3], v[\a:\a+3], v[\b:\b+3], 0
.endm
.macro trv d, a, o
ds_read_b64_tr_b16 v[\d:\d+1], v[\a] offset:\o
.endm
.macro rda d, a, o
ds_read_b128 a[\d:\d+3], v[\a] offset:\o
.endm
"""
_M = re.compile(r'^v_mfma_f32_16x16x32_bf16 v\[(\d+):\d+\], ([va])\[(\d+):\d+\], ([va])\[(\d+):\d+\], (0|v\[(\d+):\d+\])$')
_T = re.compile(r'^ds_read_b64_tr_b16 v\[(\d+):\d+\], v(\d+) offset:(\d+)$')
_D = re.compile(r'^ds_read_b128 a\[(\d+):\d+\], v(\d+) offset:(\d+)$')
def compact(t):
    m = _M.match(t)
    if m and (m.group(6) == '0' or m.group(7) == m.group(1)):
        return 'm%s%s%s %s,%s,%s' % (m.group(2), m.group(4), '0' if m.group(6) == '0' else '', m.group(1), m.group(3), m.group(5))
    m = _T.match(t)
    if m: return 'trv %s,%s,%s' % m.groups()
    m = _D.match(t)
    if m: return 'rda %s,%s,%s' % m.groups()
    return t

def render(ins, small=False):
    return '\n'.join((compact(x.text) if small else x.text) for x in ins) + '\n'
```

```python
import sys, math, struct
from core import *

NAME = 'gated_mix__compressed_kv_cla__glu_gated_glu__prompt'
KN = NAME + '_kernel'
MF = 'v_mfma_f32_16x16x32_bf16'
MB = 1 << 20
SC = 'sc1'

WS_KV = 0
WS_CTX = 32 * MB
WS_H = 48 * MB
WS_G = 56 * MB
WS_F = 57 * MB
WS_P = 58 * MB
WS_T = 75 * MB
WS_SIZE = 76 * MB

sX, sC, sWQ, sWK, sWV, sWO, sWG, sWU, sWD, sGW, sOUT, sWS, sDBG = [4 + 4 * i for i in range(13)]
sH, sI, sW, sFC = 56, 57, 58, 59
sTB = 60
sNX, sD8, sD16, sCTX = 61, 62, 63, 64
sT0, sT1, sT2, sT3 = 65, 66, 67, 68
sSO = 69
sM0W, sM0A = 70, 71
sHC, sFB = 72, 73
sNEED = 74
sST = 75
sQS, sNL = 76, 77
sROWC, sROWX = 78, 79
sNOF = 80
sIT, sTD, sTI = 81, 82, 83
sSRC = 84
sKVH = 85
sNUL = 88
sE0 = 92
sBAD = 94
sB = [96, 97, 98, 99]
sHB = [0, 1]

vL16 = 1
vWR = 2
vAR = 6
vDW, vDF = 8, 9
vDA = 10
vPF = 12
vFL = 16
vWR2 = 20
vT = 24
vDUM = 28
vSP = 32
vQ = 64
vO = 128
vRD = 6
vQA = 10
vXA = 11
vMK = 12
vLs = 20
vS = vSP
vP = vSP + 16

OPT = dict(nt=1, pfl='c-2,k-1,x18.1,g23,u24,d88,o92', pf=1, wspan=4.0, xspan=2.5, kst=28, vst=16, forcebad=0)
def f32(x): return '0x%08x' % struct.unpack('<I', struct.pack('<f', x))[0]
NEG = f32(-1e30)
L_LO, L_HI = f32(2.0 ** -40), f32(2.0 ** 40)

STAMPS = False
def stamp_ops(k):
    if not STAMPS: return []
    return ['s_memtime s[100:101]', 's_memrealtime s[86:87]', 's_waitcnt lgkmcnt(0)',
            'v_writelane_b32 v30, s100, %s' % k, 'v_writelane_b32 v31, s86, %s' % k]
def stamp(E, k):
    E(stamp_ops(k))
def stamp_flush(E):
    if not STAMPS: return
    E('s_lshl_b32 s3, s2, 2')
    E('s_add_u32 s3, s3, %s' % S(sW))
    E('s_lshl_b32 s3, s3, 9')
    E('s_add_u32 s3, s3, %d' % WS_T)
    E('v_lshlrev_b32 v29, 3, v0')
    E('buffer_store_dwordx2 v[30:31], v29, %s, s3 offen' % S(sWS, 4), 'stamp')


def spin(E, name, load, reg, test):
    E.tailcode.append([name + '_spin:', 's_add_u32 s3, s3, 1', 's_cmp_gt_u32 s3, 0x200000', 's_cbranch_scc1 %s_back' % name,
                       load, 's_waitcnt vmcnt(0)'] + test + ['s_cbranch_scc0 %s_spin' % name, 's_branch %s_back' % name])
    return test + ['s_cbranch_scc0 %s_spin' % name, name + '_back:']


def setup_first(E):
    E('s_cmp_ge_u32 s2, 256')
    E('s_cbranch_scc1 L_end')
    tab = [(sC, 8, 2 * MB), (sWK, 24, 4 * MB), (sWS, 104, WS_SIZE), (sX, 0, 2 * MB), (sWQ, 16, 4 * MB), (sWV, 32, 4 * MB), (sWO, 40, 4 * MB),
           (sWG, 56, 1835008), (sWU, 64, 1835008), (sWD, 72, 1835008), (sGW, 80, 1024), (sOUT, 88, 2 * MB), (sDBG, 96, 256)]
    for s, off, sz in tab: E('s_load_dwordx2 %s, s[0:1], %d' % (S(s, 2), off))
    E('v_lshrrev_b32 v1, 6, v0')
    E('v_and_b32 v0, 63, v0')
    E('v_readfirstlane_b32 %s, v1' % S(sW))
    E('v_lshlrev_b32 v%d, 4, v0' % vL16)
    stamp(E, 0)
    E('s_lshr_b32 %s, s2, 3' % S(sT1))
    if OPT['pf']:
        E('s_getpc_b64 %s' % S(sE0, 2))
        E('s_and_b32 %s, %s, 0xffffff00' % (S(sE0), S(sE0)))
        E('s_lshl_b32 %s, %s, 2' % (S(sT0), S(sT1)))
        E('s_add_u32 %s, %s, %s' % (S(sT0), S(sT0), S(sW)))
        E('s_min_u32 %s, %s, (L_end-%s)/1024-2' % (S(sT0), S(sT0), KN))
        E('s_lshl_b32 %s, %s, 10' % (S(sT0), S(sT0)))
        E('v_add_u32 v%d, %s, v%d' % (vT, S(sT0), vL16))
        E('global_load_dword v%d, v%d, %s' % (vDUM, vT, S(sE0, 2)), 'pfx')
    for s, off, sz in tab:
        E('s_mov_b32 %s, 0x%x' % (S(s + 2), sz))
        E('s_mov_b32 %s, 0x20000' % S(s + 3))
    E('s_and_b32 %s, s2, 7' % S(sT0))
    E('s_and_b32 %s, %s, 3' % (S(sT2), S(sT1)))
    E('s_lshr_b32 %s, %s, 2' % (S(sI), S(sT1)))
    E('s_lshl_b32 %s, %s, 2' % (S(sH), S(sT0)))
    E('s_add_u32 %s, %s, %s' % (S(sH), S(sH), S(sT2)))
    E('s_lshl_b32 %s, %s, 8' % (S(sHC), S(sH)))
    E('s_lshl_b32 %s, %s, 2' % (S(sT1), S(sI)))
    E('s_add_u32 %s, %s, %s' % (S(sT1), S(sT1), S(sW)))
    E('s_lshl_b32 %s, %s, 16' % (S(sROWC), S(sT1)))
    E('s_lshl_b32 %s, %s, 20' % (S(sKVH), S(sH)))
    E('s_lshl_b32 %s, %s, 15' % (S(sST), S(sT1)))
    E('s_add_u32 %s, %s, %s' % (S(sST), S(sST), S(sKVH)))
    E('s_lshr_b32 %s, %s, 1' % (S(sT1), S(sW)))
    E('s_lshl_b32 %s, %s, 3' % (S(sT1), S(sT1)))
    E('s_and_b32 %s, %s, 1' % (S(sT3), S(sW)))
    E('s_add_u32 %s, %s, %s' % (S(sT1), S(sT1), S(sT3)))
    E('s_lshl_b32 %s, %s, 10' % (S(sM0W), S(sT1)))
    E('s_lshl_b32 %s, %s, 14' % (S(sD16), S(sW)))
    E('s_add_u32 %s, %s, %d' % (S(sM0A), S(sD16), 96 * 1024))
    t0, t1, t2, t3 = vT, vT + 1, vT + 2, vT + 3
    E('s_lshl_b32 %s, s2, 2' % S(sSO))
    E('s_add_u32 %s, %s, %s' % (S(sSO), S(sSO), S(sW)))
    E('s_lshl_b32 %s, %s, 11' % (S(sSO), S(sSO)))
    E('v_lshl_add_u32 v%d, v0, 5, %s' % (vPF, S(sSO)))
    E('v_lshrrev_b32 v%d, 3, v0' % t0)
    E('v_and_b32 v%d, 7, v0' % t1)
    E('v_lshrrev_b32 v%d, 4, v0' % t2)
    E('v_xor_b32 v%d, v%d, v%d' % (t1, t1, t2))
    E('v_lshlrev_b32 v%d, 4, v%d' % (t1, t1))
    E('v_lshl_add_u32 v%d, v%d, 10, v%d' % (vDA, t0, t1))
    E('v_xor_b32 v%d, 64, v%d' % (vDA + 1, vDA))
    E('s_lshl_b32 %s, %s, 3' % (S(sT1), S(sT1)))
    E('v_add_u32 v%d, %s, v%d' % (t0, S(sT1), t0))
    E('v_bfe_u32 v%d, v0, 1, 2' % t1)
    E('v_bfe_u32 v%d, v0, 4, 1' % t2)
    E('s_lshl_b32 %s, %s, 1' % (S(sT3), S(sT3)))
    E('v_or_b32 v%d, %s, v%d' % (t2, S(sT3), t2))
    E('v_xor_b32 v%d, v%d, v%d' % (t1, t1, t2))
    E('v_and_b32 v%d, 1, v0' % t2)
    E('v_lshlrev_b32 v%d, 4, v%d' % (t2, t2))
    E('v_lshl_add_u32 v%d, v%d, 5, v%d' % (t1, t1, t2))
    E('v_lshl_add_u32 v%d, v%d, 13, v%d' % (vDW, t0, t1))
    E('v_mul_u32_u24 v%d, 3584, v%d' % (t0, t0))
    E('v_add_u32 v%d, v%d, v%d' % (vDF, t0, t1))
    E('s_waitcnt lgkmcnt(0)')


def setup_rest(E):
    t0, t1, t2, t3 = vT, vT + 1, vT + 2, vT + 3
    E('v_lshlrev_b32 v%d, 1, v%d' % (vPF + 1, vPF))
    E('s_lshr_b32 %s, s2, 3' % S(sT1))
    E('s_lshl_b32 %s, %s, 2' % (S(sT1), S(sT1)))
    E('s_add_u32 %s, %s, %s' % (S(sT1), S(sT1), S(sW)))
    E('s_lshl_b32 %s, %s, 15' % (S(sT1), S(sT1)))
    E('s_lshl_b32 %s, %s, 10' % (S(sT3), S(sT0)))
    E('s_add_u32 %s, %s, %s' % (S(sT1), S(sT1), S(sT3)))
    E('v_lshrrev_b32 v%d, 4, v0' % t2)
    E('v_and_b32 v%d, 15, v0' % t0)
    E('v_lshlrev_b32 v%d, 6, v%d' % (t1, t0))
    E('v_lshl_add_u32 v%d, v%d, 13, v%d' % (t1, t2, t1))
    E('v_add_u32 v%d, %s, v%d' % (vPF + 2, S(sT1), t1))


def setup_rest2(E):
    t0, t1, t2, t3 = vT, vT + 1, vT + 2, vT + 3
    E('s_lshl_b32 %s, %s, 5' % (S(sT1), S(sI)))
    E('s_add_u32 %s, %s, %s' % (S(sT1), S(sT1), S(sH)))
    E('s_lshl_b32 %s, %s, 10' % (S(sT1), S(sT1)))
    E('s_add_u32 %s, %s, %d' % (S(sT1), S(sT1), WS_F))
    E('s_cmp_lg_u32 %s, 0' % S(sW))
    E('s_cselect_b32 %s, 0x%x, %s' % (S(sT1), WS_SIZE, S(sT1)))
    E('v_mov_b32 v%d, 0' % t3)
    E('buffer_store_dword v%d, v%d, %s, %s offen %s' % (t3, vL16, S(sWS, 4), S(sT1), SC), 'st')
    E('v_lshrrev_b32 v%d, 1, v%d' % (t1, t0))
    E('v_xor_b32 v%d, v%d, v%d' % (t1, t1, t2))
    E('v_lshlrev_b32 v%d, 4, v%d' % (t1, t1))
    E('v_lshl_add_u32 v%d, v%d, 7, v%d' % (t1, t0, t1))
    E('v_add_u32 v%d, %s, v%d' % (vAR, S(sM0A), t1))
    E('v_xor_b32 v%d, 64, v%d' % (vAR + 1, vAR))
    E('v_bfe_u32 v%d, v0, 2, 2' % t0)
    E('v_lshl_add_u32 v%d, v%d, 3, v%d' % (t1, t2, t0))
    E('v_lshlrev_b32 v%d, 7, v%d' % (t1, t1))
    E('v_and_b32 v%d, 3, v0' % t2)
    E('v_lshl_add_u32 v%d, v%d, 3, v%d' % (t1, t2, t1))
    E('v_bfe_u32 v%d, v0, 3, 2' % t0)
    E('v_lshl_add_u32 v%d, v%d, 5, v%d' % (vWR, t0, t1))
    for c in range(1, 4): E('v_xor_b32 v%d, %d, v%d' % (vWR + c, 32 * c, vWR))
    for c in range(4): E('v_add_u32 v%d, 0x10000, v%d' % (vWR2 + c, vWR + c))
    E('s_sub_u32 %s, 15, %s' % (S(sT3), S(sI)))
    E('s_cmp_lt_u32 %s, 2' % S(sW))
    E('s_cselect_b32 %s, %s, %s' % (S(sT3), S(sT3), S(sI)))
    E('s_lshl_b32 %s, %s, 1' % (S(sT3), S(sT3)))
    E('s_and_b32 %s, %s, 1' % (S(sTB), S(sW)))
    E('s_add_u32 %s, %s, %s' % (S(sTB), S(sTB), S(sT3)))
    E('s_lshl_b32 %s, %s, 16' % (S(sROWX), S(sTB)))
    E('s_lshr_b32 %s, %s, 1' % (S(sT1), S(sT0)))
    E('s_mul_i32 %s, %s, 7' % (S(sT1), S(sT1)))
    E('s_and_b32 %s, %s, 1' % (S(sT0), S(sT0)))
    E('s_lshl_b32 %s, %s, 2' % (S(sFC), S(sT0)))
    E('s_add_u32 %s, %s, %s' % (S(sFC), S(sFC), S(sT2)))
    E('s_cmp_eq_u32 %s, 3' % S(sT2))
    E('s_cselect_b32 %s, 3, %s' % (S(sFC), S(sFC)))
    E('s_add_u32 %s, %s, %s' % (S(sFC), S(sFC), S(sT1)))
    E('s_lshl_b32 %s, %s, 7' % (S(sFB), S(sFC)))
    E('s_lshr_b32 %s, %s, 2' % (S(sT1), S(sI)))
    E('s_xor_b32 %s, %s, %s' % (S(sT1), S(sT1), S(sT0)))
    E('s_cmp_eq_u32 %s, 3' % S(sT2))
    E('s_cselect_b32 %s, %s, 0' % (S(sNOF), S(sT1)))
    E('s_mov_b32 %s, %s' % (S(sQS), f32(math.log2(math.e) / math.sqrt(128.0))))
    E('s_mov_b32 %s, %s' % (S(sNL), f32(-math.log2(math.e))))
    for k in range(4): E('s_add_u32 %s, %s, %d' % (S(sB[k]), S(sST), 4096 * k))
    E('s_mul_i32 %s, %s, 28' % (S(sHB[0]), S(sTB)))
    E('s_add_u32 %s, %s, %s' % (S(sHB[0]), S(sHB[0]), S(sFC)))
    E('s_lshl_b32 %s, %s, 13' % (S(sHB[0]), S(sHB[0])))
    E('s_add_u32 %s, %s, %d' % (S(sHB[0]), S(sHB[0]), WS_H))
    E('s_add_u32 %s, %s, 4096' % (S(sHB[1]), S(sHB[0])))
    E('v_cmp_eq_u32 vcc, 0, v0')
    E('v_mov_b32 v%d, 0x1000' % t0)
    E('s_lshl_b32 %s, %s, 2' % (S(sT1), S(sH)))
    E('s_cmp_eq_u32 %s, 0' % S(sW))
    E('s_cselect_b32 %s, %s, 0x1000' % (S(sT1), S(sT1)))
    E('s_cselect_b32 %s, 8, 0' % S(sNEED))
    E('v_mov_b32 v%d, %s' % (t1, S(sT1)))
    E('v_cndmask_b32 v%d, v%d, v%d, vcc' % (vFL, t0, t1))
    E('s_lshl_b32 %s, %s, 2' % (S(sT1), S(sI)))
    E('s_add_u32 %s, %s, 128' % (S(sT1), S(sT1)))
    E('v_mov_b32 v%d, %s' % (t1, S(sT1)))
    E('v_cndmask_b32 v%d, v%d, v%d, vcc' % (vFL + 1, t0, t1))
    E('v_mov_b32 v%d, 1' % (vFL + 2))
    E('s_lshl_b32 %s, %s, 13' % (S(sD8), S(sW)))
    E('s_add_u32 %s, %s, %s' % (S(sSRC), S(sKVH), S(sD8)))
    E('s_add_u32 %s, %s, 0x8000' % (S(sD8), S(sD8)))
    E('s_mov_b32 %s, %s' % (S(sNUL), S(sWS)))
    E('s_mov_b32 %s, %s' % (S(sNUL + 1), S(sWS + 1)))
    E('s_mov_b32 %s, 0x%x' % (S(sNUL + 2), 32 * MB))
    E('s_mov_b32 %s, 0x20000' % S(sNUL + 3))
    E('s_sub_u32 %s, %s, 2' % (S(sT0), S(sW)))
    E('s_cmp_lt_u32 %s, 2' % S(sW))
    E('s_cselect_b32 %s, 2, %s' % (S(sT0), S(sT0)))
    E('s_lshl_b32 %s, %s, 1' % (S(sTI), S(sI)))
    E('s_add_u32 %s, %s, %s' % (S(sTD), S(sTI), S(sT0)))
    E('s_add_u32 %s, %s, 1' % (S(sNX), S(sTI)))
    E('s_mov_b32 %s, 0' % S(sIT))
    E('s_mov_b32 s3, 0')
    E('s_mov_b64 %s, 0' % S(sBAD, 2))
    E(c_ctx_base(sTB))


def pf(srd, kind):
    return I('buffer_load_dword v%d, v%d, %s, 0 offen%s' % (vDUM, vPF + kind, S(srd, 4), ' nt' if (OPT['nt'] and kind == 2) else ''), 'pfx')
PFT = dict(c=(sC, 0), x=(sX, 0), k=(sWK, 2), v=(sWV, 2), q=(sWQ, 2), g=(sWG, 0), u=(sWU, 0), d=(sWD, 0), o=(sWO, 1))
def pf_list(): return [(t[0], float(t[1:])) for t in OPT['pfl'].split(',') if t]


def w_dma(kind, s, slot, si):
    if kind in 'KV':
        srd = [sWK if kind == 'K' else sWV] * 2; pitch = 8192; vo = vDW; base = sHC
        org = [128 * s * pitch, 128 * s * pitch + 128]
    elif kind == 'F':
        srd = [sWG, sWU]; pitch = 3584; vo = vDF; base = sFB
        org = [128 * s * pitch] * 2
    else:
        srd = [sWQ] * 2; pitch = 8192; vo = vDW; base = sHC
        org = [128 * (2 * s + p) * pitch + 128 * int(kind[1]) for p in range(2)]
    return [['s_add_u32 m0, %s, %d' % (S(sM0W), slot * 32768 + p * 16384 + a * 2048),
             's_add_u32 %s, %s, %d' % (S(sSO), S(base), org[p] + a * 16 * pitch),
             I('buffer_load_dwordx4 v%d, %s, %s offen %slds' % (vo, S(srd[p], 4), S(sSO), 'nt ' if (OPT['nt'] and kind != 'F') else ''), ('W', si))]
            for p in range(2) for a in range(4)]

def a_dma(which, n):
    srd, row = (sC, sROWC) if which == 'c' else (sX, sROWX)
    return [['s_add_u32 m0, %s, %d' % (S(sM0A), (n & 1) * 8192 + q * 1024),
             's_add_u32 %s, %s, %d' % (S(sSO), S(row), n * 128 + q * 8192),
             I('buffer_load_dwordx4 v%d, %s, %s offen lds' % (vDA + (q & 1), S(srd, 4), S(sSO)), (which, n))] for q in range(8)]

def a_reads(n):
    return ['ds_read_b128 %s, v%d offset:%d' % (Ac(16 * (2 * n + kk) + 4 * tt, 4), vAR + kk, (n & 1) * 8192 + tt * 2048)
            for tt in range(4) for kk in range(2)]
def a_regs(n): return {('a', r) for r in range(32 * n, 32 * n + 32)}
def frag(B, kk): return vSP + 16 * (B & 1) + 4 * kk
def w_reads(B, b):
    slot = (B >> 3) % 3
    base = (vWR2 if slot == 2 else vWR) + b['c']
    off = (slot & 1) * 32768 + b['pan'] * 16384
    return ['ds_read_b64_tr_b16 %s, v%d offset:%d' % (V(frag(B, kk) + 2 * jh, 2), base, off + kk * 4096 + jh * 512)
            for kk in range(4) for jh in range(2)]

def ab_prologue(E):
    pfl = pf_list()
    for n, t in pfl:
        if t == -2: E([pf(*PFT[n])])
    for g in a_dma('c', 0): E(g)
    w0 = w_dma('K', 0, 0, 0)
    for g in w0[:4]: E(g)
    for g in a_dma('c', 1): E(g)
    for g in w0[4:]: E(g)
    for g in w_dma('K', 1, 1, 1): E(g)
    setup_rest(E)
    for n, t in pfl:
        if t == -1: E([pf(*PFT[n])])
    setup_rest2(E)
    E(WaitV({('c', 0)}))
    E(a_reads(0))
    E(WaitV({('c', 1)}))
    E(a_reads(1))
    E(WaitL(a_regs(0)))
    for g in a_dma('c', 2): E(g)
    E(WaitV({('W', 0)}))
    E('s_barrier')
    E(w_reads(0, dict(c=0, pan=0)))
    E(WaitL())
    stamp(E, 1)


def c_vsetup(dummy):
    t0, t1 = vT, vT + 1
    ops = ['v_add_u32 v%d, 0x8000, v%d' % (vRD, vL16), 'v_add_u32 v%d, 0x18000, v%d' % (vRD + 1, vL16),
           's_lshr_b32 %s, %s, 1' % (S(sT0), S(sW)), 's_xor_b32 %s, %s, %s' % (S(sT0), S(sT0), S(sW)),
           's_and_b32 %s, %s, 1' % (S(sT0), S(sT0)), 's_lshl_b32 %s, %s, 14' % (S(sT0), S(sT0)),
           's_add_u32 %s, %s, 0x20000' % (S(sT1), S(sT0)), 'v_add_u32 v%d, %s, v%d' % (vQA, S(sT1), vL16),
           's_lshr_b32 %s, %s, 1' % (S(sT0), S(sW)), 's_mul_i32 %s, %s, %d' % (S(sT0), S(sT0), 0x20000 - dummy),
           'v_subrev_u32 v%d, %s, v%d' % (vXA, S(sT0), vQA)]
    ops += mask_ops()
    return ops

def mask_ops():
    t0, t1 = vT, vT + 1
    ops = ['v_lshrrev_b32 v%d, 4, v0' % t0, 'v_lshlrev_b32 v%d, 2, v%d' % (t0, t0), 'v_and_b32 v%d, 15, v0' % t1,
           'v_sub_u32 v%d, v%d, v%d' % (t0, t1, t0)]
    for r in range(4):
        ops += ['v_subrev_u32 v%d, %d, v%d' % (t1, r, t0), 'v_ashrrev_i32 v%d, 31, v%d' % (t1, t1), 'v_and_b32 v%d, %s, v%d' % (vMK + r, NEG, t1)]
    return ops

POLL1 = 'buffer_load_dword v%d, v%d, %s, 0 offen sc1' % (vFL + 3, vFL, S(sDBG, 4))
TEST1 = ['v_readfirstlane_b32 %s, v%d' % (S(sT2), vFL + 3), 's_cmp_ge_u32 %s, %s' % (S(sT2), S(sNEED))]


def ab_stream(E, ffn):
    stages = []
    for s in range(4): stages.append(('K', s))
    for s in range(4): stages.append(('V', s))
    if ffn:
        for s in range(4): stages.append(('F', s))
    for hf in range(2):
        for s in range(2): stages.append(('Q%d' % hf, s))
    NS = len(stages)
    NB = 8 * NS
    END = 16 * NB

    def blocks(si):
        kind, s = stages[si]
        out = []
        for b in range(8):
            if kind in 'KV': out.append(dict(pan=b >> 2, c=b & 3, ap=s, acc=vO + 16 * b, first=s == 0, swap=kind == 'V'))
            elif kind == 'F': out.append(dict(pan=b & 1, c=b >> 1, ap=s, acc=vO + 16 * b, first=s == 0, swap=False))
            else:
                base = vQ if kind == 'Q0' else vO
                out.append(dict(pan=b & 1, c=b >> 1, ap=2 * s + (b & 1), acc=base + 16 * (b >> 1), first=(s == 0 and (b & 1) == 0), swap=False))
        return out
    blk = [b for si in range(NS) for b in blocks(si)]

    mains = []
    for B, b in enumerate(blk):
        for tt in range(4):
            for kk in range(4):
                w = V(frag(B, kk), 4); x = Ac(16 * (4 * b['ap'] + kk) + 4 * tt, 4)
                acc = V(b['acc'] + 4 * tt, 4)
                c = '0' if (b['first'] and kk == 0) else acc
                mains.append('%s %s, %s, %s, %s' % (MF, acc, x if b['swap'] else w, w if b['swap'] else x, c))

    SIG = 11
    st_w = []
    for B in range(NB - 1):
        for k, r in enumerate(w_reads(B + 1, blk[B + 1])): st_w.append(Op(r, 16 * B, 16 * B + k + 3))
        need = {('v', r) for r in range(frag(B + 1, 0), frag(B + 1, 0) + 16)} | {('a', r) for r in range(64 * blk[B + 1]['ap'], 64 * blk[B + 1]['ap'] + 64)}
        g = 16 * B + 15
        if (B + 2) % 8 == 0 and B + 2 < NB:
            s = (B + 2) // 8
            tags = {('W', s)}
            if s == SIG: tags |= {'st'}
            if ffn and s == 14: tags |= {'poll'}
            if ffn and s == 15: tags |= {'kv0'}
            st_w.append(Op(WaitLV(need, tags), g, g))
            if ffn and s == 14: st_w.append(Op(spin(E, 'L_kv1', POLL1, vFL + 3, TEST1), g, g))
            st_w.append(Op('s_barrier', g, g))
            for x in stamp_ops(1 + s + (0 if ffn or s < 8 else 4)): st_w.append(Op(x, g, g))
        else:
            st_w.append(Op(WaitL(need), g, g))

    ev = []
    INF = 1 << 30
    for si in range(2, NS):
        t0 = max(8 * (si - 2) - 1, 0)
        for k, g in enumerate(w_dma(stages[si][0], stages[si][1], si % 3, si)):
            ev.append((t0 + k * (7.0 / 8 if si <= 4 else OPT['wspan'] / 8), 0, g, INF))
    def act(which, n, t_dma, span, t_rd):
        for k, g in enumerate(a_dma(which, n)):
            if k == 0: g = [WaitL(a_regs((n - 2) % 8))] + g
            ev.append((t_dma + k * span / 8.0, 1, g, INF))
        act_rd(which, n, t_rd)
    def act_rd(which, n, t_rd):
        for k, r in enumerate(a_reads(n)):
            if which == 'c': use = 8 * (n >> 1)
            elif ffn: use = 8 * (8 + (n >> 1))
            else: use = 8 * (8 + (n >> 2)) + ((n >> 1) & 1)
            ev.append((t_rd + k * 0.2, 2, ([WaitV({(which, n)})] if k == 0 else []) + [r], 16 * use - 6 - (7 - k)))
    act_rd('c', 2, 3.0)
    act('c', 3, 0, 2, 5.0)
    act('c', 4, 5.0, 3.0, 11)
    act('c', 5, 8, 2.0, 13.0)
    act('c', 6, 13.0, 3.0, 19)
    act('c', 7, 16, 2.0, 21.0)
    step = 6 if ffn else 4
    for n in range(8):
        T = 40 + step * n
        act('x', n, T - 2 * step + 2.1, OPT['xspan'], T)
    tpf = 0
    for n, t in pf_list():
        if t >= 0:
            t = t if ffn else min(t, 72)
            ev.append((t, 3, [pf(*PFT[n])], INF)); tpf = max(tpf, t)
    ev.append((8 * SIG - 1, -1, [I('buffer_atomic_add v%d, v%d, %s, 0 offen sc1' % (vFL + 2, vFL, S(sDBG, 4)), 'sig')], INF))
    if ffn:
        ev.append((102, 3, [I(POLL1, 'poll')], INF))
        for par in range(2):
            for k, g in enumerate(c_dma(par, 8, 'kv%d' % par, 32768 * par)):
                ev.append((111 + 2 * par + k * 0.25, 1, g, INF))
        for k, r in enumerate(c_reads(0)): ev.append((120 + k * 0.22, 2, [r], END - 5))
    ev.sort(key=lambda e: (e[0], e[1]))
    st_m = []
    for t, _, g, hard in ev:
        lo = int(t * 16)
        for k, x in enumerate(g):
            last = k == len(g) - 1
            isw = isinstance(x, (WaitL, WaitV))
            st_m.append(Op(x, lo if (last or isw) else None, min(lo + 24, hard) if last else None))

    eps = [[] for _ in range(4)]
    def cvt(d, a): return 'v_cvt_pk_bf16_f32 v%d, v%d, v%d' % (d, a, a + 1)
    def store(r, base, off, tag='st'):
        return I('buffer_store_dwordx4 %s, v%d, %s, %s offen offset:%d %s' % (V(r, 4), vL16, S(sWS, 4), S(base), off, SC), tag)
    def pack(d, a, b): return [cvt(d, a), cvt(d + 1, a + 2), cvt(d + 2, b), cvt(d + 3, b + 2)]
    def clr(r): return 'v_mov_b64 %s, 0' % V(r, 2)
    LAT = 2
    def done(si, b, tt): return 16 * (8 * si + b) + 4 * tt + 3 + LAT
    st_o = []
    kst, vst = OPT['kst'], OPT['vst']
    for p in range(4):
        for tt in range(4):
            a = vO + 16 * (2 * p) + 4 * tt; b = vO + 16 * (2 * p + 1) + 4 * tt
            d = vQ + 16 * p + 4 * tt
            ops = pack(d, a, b)
            hi = done(3, 2 * p + 1, tt) + 40
            eps[tt].append(Op(ops[0], done(3, 2 * p, tt))); eps[tt].append(Op(ops[1]))
            eps[tt].append(Op(ops[2], done(3, 2 * p + 1, tt))); eps[tt].append(Op(ops[3], None, hi))
            n = 4 * p + tt
            lo = max(hi + 1, 16 * 28 + kst * n)
            st_o.append(Op(store(d, sB[tt], p * 1024), lo, lo + 20))
    for k in range(4): st_o.append(Op('s_add_u32 %s, %s, %d' % (S(sB[k]), S(sST), 16384 + 4096 * k)))
    for c in range(8):
        for ks in range(2):
            a = vO + 16 * c + 8 * ks; b = a + 4
            n = 2 * c + ks
            d = (vQ + 4 * n) if ffn else a
            ops = pack(d, a, b)
            e = eps[2 * (c & 1) + ks]
            hi = done(7, c, 2 * ks + 1) + 40
            assert 16 * 28 + kst * n + 22 < done(7, c, 2 * ks)
            e.append(Op(ops[0], done(7, c, 2 * ks))); e.append(Op(ops[1]))
            e.append(Op(ops[2], done(7, c, 2 * ks + 1))); e.append(Op(ops[3], None, hi))
            lo = max(hi + 1, 16 * 60 + (vst if ffn else min(vst, 16)) * n)
            st_o.append(Op(store(d, sB[c >> 1], ((c & 1) * 2 + ks) * 1024), lo, lo + 20))
            assert lo + 22 < min(16 * 8 * (12 if ffn else 10), 16 * (8 * SIG - 1) - 1)
    q0 = 12 if ffn else 8
    if ffn:
        for fs in range(2):
            for tt in range(4):
                e = eps[tt]
                d = vO + 16 * (4 * fs) + 4 * tt
                for t in range(2):
                    g = vO + 16 * (4 * fs + 2 * t) + 4 * tt; u = g + 16
                    for r0 in (0, 2):
                        rs = (r0, r0 + 1)
                        for r in rs: e.append(Op('v_mul_f32 v%d, %s, v%d' % (g + r, S(sNL), g + r), done(11, 4 * fs + 2 * t, tt)))
                        for r in rs: e.append(Op('v_exp_f32 v%d, v%d' % (g + r, g + r)))
                        for r in rs: e.append(Op('v_add_f32 v%d, 1.0, v%d' % (g + r, g + r)))
                        for r in rs: e.append(Op('v_rcp_f32 v%d, v%d' % (g + r, g + r)))
                        for r in rs: e.append(Op('v_mul_f32 v%d, v%d, v%d' % (g + r, g + r, u + r), done(11, 4 * fs + 2 * t + 1, tt)))
                        e.append(Op(cvt(d + 2 * t + r0 // 2, g + r0)))
                e.append(Op(store(d, sHB[fs], tt * 1024, 'hst'), None, (16 * 8 * 14 - 2) if fs == 0 else 16 * 118))
                if fs == 1:
                    for b in (5, 6, 7, 4):
                        for r in (0, 2): e.append(Op(clr(vO + 16 * b + 4 * tt + r)))
    qs = [[] for _ in range(4)]
    for hf in range(2):
        base = vQ if hf == 0 else vO
        si = q0 + 2 * hf + 1
        for p in range(2):
            for tt in range(4):
                e = qs[tt]
                d = vQ + 16 * (2 * hf + p) + 4 * tt
                for t in range(2):
                    a = base + 16 * (2 * p + t) + 4 * tt
                    for r in range(4): e.append(Op('v_mul_f32 v%d, %s, v%d' % (a + r, S(sQS), a + r), done(si, 2 * (2 * p + t) + 1, tt)))
                    e.append(Op(cvt(d + 2 * t, a))); e.append(Op(cvt(d + 2 * t + 1, a + 2)))
                    if ffn and hf == 1:
                        for r in (0, 2): e.append(Op(clr(a + r)))
                if ffn:
                    wr = lambda pp: 'ds_write_b128 v%d, %s offset:%d' % (vXA, V(vQ + 16 * pp + 4 * tt, 4), 1024 * (4 * pp + tt))
                    if hf == 0 and p == 1:
                        e.append(Op(wr(0), 16 * 119)); e.append(Op(wr(1)))
                    if hf == 1: e.append(Op(wr(2 + p)))
    st_c = []
    if ffn:
        lo = 16 * max(88, int(tpf) + 3)
        for x in c_vsetup(0x10000): st_c.append(Op(x, lo, 16 * 110))
        for r in (0, 2): st_c.append(Op(clr(vLs + r), 16 * 119))
    rep = []
    schedule(E, mains, [st_w, st_m, st_o, st_c] + eps + qs, report=rep, prio={1: 0, 0: 1})
    E.notes.append('AB(ffn=%d) overflow cycles %d' % (ffn, rep[0]))
    if ffn:
        c_clear_small(E, False)
        E(WaitL({('a', r) for r in range(96)}))
        E('s_add_u32 %s, %s, %d' % (S(sSRC), S(sSRC), 65536))
        stamp(E, 17)
        c_check_exit(E, 0)
        return
    t0 = vT + 2
    E(I(POLL1, 'poll'))
    E('v_lshrrev_b32 v%d, 4, v0' % t0)
    E('v_lshlrev_b32 v%d, 4, v%d' % (t0, t0))
    for ks in range(16):
        E('buffer_load_dwordx4 %s, v%d, %s, 0 offen offset:%d' % (V(vO + 64 + 4 * ks, 4), t0, S(sGW, 4), ks * 64))
    E(c_vsetup(0))
    E(WaitV())
    E(spin(E, 'L_kv2', POLL1, vFL + 3, TEST1))
    E('s_barrier')
    for par in range(2):
        for g in c_dma(par, 8, 'kv%d' % par, 32768 * par): E(g)
    E('s_add_u32 %s, %s, %d' % (S(sSRC), S(sSRC), 65536))
    for f in range(16): E('ds_write_b128 v%d, %s offset:%d' % (vXA, V(vQ + 4 * f, 4), 1024 * f))
    for tt in range(4):
        for ks in range(16):
            acc = V(vSP + 4 * tt, 4)
            E('%s %s, %s, %s, %s' % (MF, acc, V(vO + 64 + 4 * ks, 4), Ac(16 * ks + 4 * tt, 4), acc if ks else '0'))
    E('s_lshl_b32 %s, %s, 8' % (S(sT0), S(sTB)))
    E('s_add_u32 %s, %s, %d' % (S(sT0), S(sT0), WS_G))
    E('v_and_b32 v%d, 15, v0' % t0)
    E('v_lshlrev_b32 v%d, 2, v%d' % (t0, t0))
    for op in ('v_mul_f32 v%%d, %s, v%%d' % S(sNL), 'v_exp_f32 v%d, v%d', 'v_add_f32 v%d, 1.0, v%d', 'v_rcp_f32 v%d, v%d'):
        for tt in range(4): E(op % (vSP + 4 * tt, vSP + 4 * tt))
    E('s_nop 0')
    for tt in range(4):
        E('buffer_store_dword v%d, v%d, %s, %s offen offset:%d %s' % (vSP + 4 * tt, t0, S(sWS, 4), S(sT0), tt * 64, SC), 'st')
    c_clear(E)
    c_clear_small(E)
    E(WaitLV(None, {'kv0'}))
    E('s_barrier')
    E(c_reads(0))
    E(WaitL())
    stamp(E, 17)


def aK(par, kt, p): return 128 * par + 4 * (4 * kt + p)
def aV(par, c, ks): return 128 * par + 64 + 4 * (2 * c + ks)
def c_entry_state(par):
    return ([{('a', r) for r in range(128 * par + 64 + 4 * f, 128 * par + 68 + 4 * f)} for f in range(8, 16)], [('kv', set())] * 16)
def c_check_exit(E, par):
    ok = {('a', r) for r in range(128 * par + 96, 128 * par + 128)}
    assert all(d <= ok for d in E.lq), E.lq
    assert all(not d for _, d in E.vq)

def c_reads(par):
    return ['ds_read_b128 %s, v%d offset:%d' % (Ac(128 * par + 4 * f, 4), vRD + par, 1024 * f) for f in range(32)]

def c_dma(par, n, tag='kv', add=0):
    out = []
    base = sD8 if n == 8 else sD16
    for k in range(n):
        g = []
        if k % 4 == 0:
            g = ['s_add_u32 m0, %s, %d' % (S(base), 65536 * par + 1024 * k), 's_add_u32 %s, %s, %d' % (S(sSO), S(sSRC), 1024 * k + add)]
        out.append(g + [I('buffer_load_dwordx4 v%d, %s, %s offen offset:%d %s lds' % (vL16, S(sNUL, 4), S(sSO), 1024 * (k % 4), SC), tag)])
    return out

def c_softmax(q, pp, kts, zero_rest=0):
    gaps = {}
    def put(g, x): gaps.setdefault(g, []).append(x)
    for k in range(8):
        kt = k >> 1
        a = vS + 2 * k
        d = vP + 8 * pp + k
        if kt < kts:
            for j in range(2):
                put(8 + 4 * k + 2 * j, 'v_exp_f32 v%d, v%d' % (a + j, a + j))
                put(13 + 4 * k, 'v_add_f32 v%d, v%d, v%d' % (vLs + q, vLs + q, a + j))
            put(11 + 4 * k, 'v_cvt_pk_bf16_f32 v%d, v%d, v%d' % (d, a, a + 1))
        elif kt < kts + zero_rest:
            put(11 + 4 * k, 'v_mov_b32 v%d, 0' % d)
    return gaps

def c_pv(q, par, pp, nks=2):
    out = []
    for c in range(8):
        for ks in range(2):
            o = V(vO + 32 * q + 4 * c, 4)
            out.append('%s %s, %s, %s, %s' % (MF, o, Ac(aV(par, c, ks), 4), V(vP + 8 * pp + 4 * ks, 4), o) if ks < nks else None)
    return out

def it_stamp():
    if not STAMPS: return []
    return ['s_add_u32 m0, %s, 18' % S(sIT)] + stamp_ops('m0')

def c_body(E, par, ndma, diag, reads=True, tail=()):
    E.set_state(c_entry_state(par))
    m = [None] * 128
    first = [[] for _ in range(128)]
    valu = [[] for _ in range(128)]
    for q in range(4):
        kts = q + 1 if diag else 4
        for kt in range(kts):
            for p in range(4):
                d = V(vS + 4 * kt, 4)
                c = d if p else (V(vMK, 4) if (diag and kt == q) else '0')
                m[32 * q + 4 * kt + p] = '%s %s, %s, %s, %s' % (MF, d, Ac(aK(par, kt, p), 4), V(vQ + 16 * p + 4 * q, 4), c)
        if q == 0: pv = c_pv(3, par ^ 1, 1)
        else: pv = c_pv(q - 1, par, (q - 1) & 1, (1 if q - 1 < 2 else 2) if diag else 2)
        m[32 * q + 16:32 * q + 32] = pv
        for g, ops in c_softmax(q, q & 1, kts, kts & 1).items():
            if 32 * q + g < 128: valu[32 * q + g] += ops
    for g, ops in c_softmax(3, 1, 4).items():
        if g >= 32: valu[g - 32] = ops + valu[g - 32]
    first[2] += [WaitLV(None, None), 's_barrier'] + it_stamp()
    if reads:
        rd = c_reads(par ^ 1)
        pos = [3 + 4 * k for k in range(31)]
        pos.insert(24, 97)
        for g, r in zip(pos, rd): first[g].append(r)
        first[120].append(WaitL({('a', r) for r in range(128 * (par ^ 1), 128 * (par ^ 1) + 96)}))
    for k, g in enumerate(c_dma(par, ndma) if ndma else []):
        at = 5 + 4 * k
        if len(g) > 1:
            first[at - 1].append(g[0]); first[at - 3 if k else 1].append(g[1])
        first[at].append(g[-1])
    sl = [100 + 2 * k for k in range(10)]
    tail = ['s_add_u32 %s, %s, 1' % (S(sIT), S(sIT))] + list(tail)
    if ndma: tail = ['s_add_u32 %s, %s, %d' % (S(sSRC), S(sSRC), 4096 * ndma)] + tail
    for g, x in zip(sl, tail): first[g].append(x)
    assert len(tail) <= len(sl)
    for g in range(128):
        if m[g]: E(m[g])
        E(first[g]); E(valu[g])
    c_check_exit(E, par ^ 1)

def c_tail(E, par):
    sm = c_softmax(3, 1, 4)
    ops = [x for g in sorted(sm) if g >= 32 for x in sm[g]]
    E([x for x in ops if 'exp' in x])
    E([x for x in ops if 'add' in x][:2])
    E([x for x in ops if 'cvt' in x])
    E([x for x in ops if 'add' in x][2:])
    E(c_pv(3, par, 1))

def lane_reduce(E, regs, op):
    t = vT
    for sw in ('v_permlane32_swap_b32', 'v_permlane16_swap_b32'):
        for k, r in enumerate(regs): E('v_mov_b32 v%d, v%d' % (t + k, r))
        for k, r in enumerate(regs): E('%s v%d, v%d' % (sw, t + k, r))
        for k, r in enumerate(regs): E('%s v%d, v%d, v%d' % (op, r, r, t + k))

def c_rowsum(E, qs, check=True):
    qs = list(qs)
    lane_reduce(E, [vLs + q for q in qs], 'v_add_f32')
    if check:
        E('s_mov_b32 %s, %s' % (S(sT0), L_LO if not OPT['forcebad'] else f32(1e30)))
        E('v_mov_b32 v%d, %s' % (vT + 1, L_HI))
        for k, q in enumerate(qs):
            E('v_med3_f32 v%d, v%d, %s, v%d' % (vT, vLs + q, S(sT0), vT + 1))
            E('v_cmp_neq_f32 %s, v%d, v%d' % ('vcc' if k & 1 else S(sE0, 2), vT, vLs + q))
            if k & 1:
                E('v_rcp_f32 v%d, v%d' % (vLs + qs[k - 1], vLs + qs[k - 1]))
                E('v_rcp_f32 v%d, v%d' % (vLs + q, vLs + q))
                E('s_or_b64 %s, %s, %s' % (S(sBAD, 2), S(sBAD, 2), S(sE0, 2)))
                E('s_or_b64 %s, %s, vcc' % (S(sBAD, 2), S(sBAD, 2)))
    else:
        for q in qs: E('v_rcp_f32 v%d, v%d' % (vLs + q, vLs + q))

def c_out(E, q):
    for p in range(4):
        a = vO + 32 * q + 8 * p
        E('s_add_u32 %s, %s, %d' % (S(sT0), S(sCTX), 4096 * p))
        for r in range(8): E('v_mul_f32 v%d, v%d, v%d' % (a + r, vLs + q, a + r))
        for r in range(4): E('v_cvt_pk_bf16_f32 v%d, v%d, v%d' % (a + r, a + 2 * r, a + 2 * r + 1))
        E('buffer_store_dwordx4 %s, v%d, %s, %s offen offset:%d %s' % (V(a, 4), vL16, S(sWS, 4), S(sT0), 1024 * q, SC), 'st')

def c_ctx_base(tb):
    return ['s_lshl_b32 %s, %s, 5' % (S(sCTX), S(tb)), 's_add_u32 %s, %s, %s' % (S(sCTX), S(sCTX), S(sH)),
            's_lshl_b32 %s, %s, 14' % (S(sCTX), S(sCTX)), 's_add_u32 %s, %s, %d' % (S(sCTX), S(sCTX), WS_CTX)]

def c_clear(E, qs=range(4)):
    for q in qs:
        for r in range(0, 32, 2): E('v_mov_b64 %s, 0' % V(vO + 32 * q + r, 2))
def c_clear_small(E, sums=True):
    if sums:
        for r in range(0, 4, 2): E('v_mov_b64 %s, 0' % V(vLs + r, 2))
    E('v_mov_b64 %s, 0' % V(vS + 10, 2))
    for r in range(12, 16): E('v_mov_b32 v%d, %s' % (vS + r, NEG))
    for r in range(0, 6, 2): E('v_mov_b64 %s, 0' % V(vP + 8 + r, 2))

def c_idle(E, par, signal, tail=()):
    E.set_state(c_entry_state(par))
    c_tail(E, par ^ 1)
    c_rowsum(E, range(4))
    c_out(E, 0)
    E(WaitLV(None, {'kv'}))
    E('s_barrier')
    E(it_stamp())
    if signal:
        E('buffer_atomic_add v%d, v%d, %s, 0 offen sc1' % (vFL + 2, vFL + 1, S(sDBG, 4)), 'sig')
    for g in c_dma(par, 16): E(g)
    E('s_add_u32 %s, %s, %d' % (S(sSRC), S(sSRC), 65536))
    for r in range(0, 4, 2): E('v_mov_b64 %s, %s' % (V(vS + r, 2), V(vQ + r, 2)))
    for f in range(16):
        E('ds_read_b128 %s, v%d offset:%d' % (V(vQ + 4 * f, 4), vQA, 1024 * f))
        E('ds_write_b128 v%d, %s offset:%d' % (vQA, V(vQ + 4 * f + 4, 4) if f < 15 else V(vS, 4), 1024 * f))
    rd = c_reads(par ^ 1)
    for q in range(1, 4):
        E(rd[8 * (q - 1):8 * q])
        c_out(E, q)
    E(rd[24:])
    c_clear(E)
    c_clear_small(E)
    E('s_sub_u32 %s, 33, %s' % (S(sT0), S(sTI)))
    E('s_sub_u32 %s, %s, %s' % (S(sT0), S(sT0), S(sW)))
    E(c_ctx_base(sT0))
    E('s_add_u32 %s, %s, 1' % (S(sIT), S(sIT)))
    E(tail)
    E(WaitL())
    c_check_exit(E, par ^ 1)

POLL2 = 'buffer_load_dword v%d, v%d, %s, 0 offen sc1' % (vFL + 3, vFL + 1, S(sDBG, 4))
TEST2 = ['v_readfirstlane_b32 %s, v%d' % (S(sT2), vFL + 3), 's_cmp_ge_u32 %s, 32' % S(sT2)]

def c_main(E):
    L = lambda x: 'L_c_' + x
    E('s_cmp_eq_u32 %s, 0' % S(sI))
    E('s_cbranch_scc1 %s' % L('mid'))
    E(L('e8') + ':')
    c_body(E, 0, 8, False)
    c_body(E, 1, 8, False, tail=['s_cmp_lt_u32 %s, %s' % (S(sIT), S(sTI))])
    E('s_cbranch_scc1 %s' % L('e8'))
    E(L('mid') + ':')
    E('s_sub_u32 %s, 15, %s' % (S(sT0), S(sI)))
    E('s_lshl_b32 %s, %s, 16' % (S(sT0), S(sT0)))
    E('s_add_u32 %s, %s, %s' % (S(sT0), S(sT0), S(sKVH)))
    E('s_add_u32 %s, %s, %s' % (S(sSRC), S(sT0), S(sD16)))
    E('s_cmp_eq_u32 %s, 2' % S(sW))
    E('s_cbranch_scc1 %s' % L('de'))
    E('s_branch %s' % L('e16'))
    E('.p2align 6')
    E(L('o16') + ':')
    c_body(E, 1, 16, False, tail=['s_cmp_eq_u32 %s, %s' % (S(sIT), S(sTD))])
    E('s_cbranch_scc1 %s' % L('de'))
    E(L('e16') + ':')
    chk = ['s_cmp_lg_u32 %s, %s' % (S(sIT), S(sNX))]
    c_body(E, 0, 16, False, tail=chk)
    E('s_cbranch_scc1 %s' % L('o16'))
    E(L('disp') + ':')
    E('s_cmp_eq_u32 %s, 17' % S(sIT))
    E('s_cbranch_scc1 %s' % L('fin'))
    E('s_add_u32 %s, %s, 1' % (S(sT0), S(sTI)))
    E('s_cmp_lg_u32 %s, %s' % (S(sIT), S(sT0)))
    E('s_cbranch_scc1 %s' % L('o0'))
    E('s_and_b32 %s, %s, 1' % (S(sT0), S(sW)))
    E('s_lshl_b32 %s, %s, 15' % (S(sT0), S(sT0)))
    E('v_add_u32 v%d, %s, v%d' % (vRD, S(sT0), vL16))
    E('v_add_u32 v%d, 0x10000, v%d' % (vRD + 1, vRD))
    E('s_add_u32 %s, %s, 1' % (S(sT0), S(sI)))
    E('s_lshl_b32 %s, %s, 16' % (S(sT0), S(sT0)))
    E('s_add_u32 %s, %s, %s' % (S(sT0), S(sT0), S(sKVH)))
    E('s_add_u32 %s, %s, %s' % (S(sSRC), S(sT0), S(sD16)))
    E('s_cmp_eq_u32 %s, 7' % S(sI))
    E('s_cselect_b32 %s, 17, 15' % S(sNX))
    E('s_cselect_b32 %s, 0, %s' % (S(sNUL + 2), S(sNUL + 2)))
    E('s_cmp_lt_u32 %s, 2' % S(sW))
    E('s_cbranch_scc1 %s' % L('o16'))
    E('s_cmp_eq_u32 %s, 3' % S(sW))
    E('s_cbranch_scc1 %s' % L('do'))
    c_idle(E, 1, True)
    E('s_branch %s' % L('e16'))
    E(L('de') + ':')
    c_body(E, 0, 16, True, tail=chk)
    E('s_cbranch_scc1 %s' % L('o16'))
    E('s_branch %s' % L('disp'))
    E(L('do') + ':')
    c_body(E, 1, 16, True)
    c_idle(E, 0, False, tail=chk)
    E('s_cbranch_scc1 %s' % L('o16'))
    E('s_branch %s' % L('disp'))
    E('.p2align 6')
    E(L('o0') + ':')
    c_body(E, 1, 0, False)
    c_body(E, 0, 0, False, reads=False)
    E(L('fin') + ':')
    E.set_state(c_entry_state(1))
    stamp(E, 35)
    E(I(POLL2, 'poll'))
    c_tail(E, 0)
    E('s_sub_u32 %s, 3, %s' % (S(sT0), S(sW)))
    E('s_lshl_b32 %s, %s, 15' % (S(sT0), S(sT0)))
    E('v_add_u32 v%d, %s, v%d' % (vXA, S(sT0), vL16))
    E('s_lshl_b32 %s, %s, 15' % (S(sT0), S(sW)))
    E('v_add_u32 v%d, %s, v%d' % (vRD, S(sT0), vL16))
    E(WaitLV(None, {'kv'}))
    E('s_barrier')
    st = E.state()
    E('s_cmp_ge_u32 %s, 2' % S(sW))
    E('s_cbranch_scc1 %s' % L('mb'))
    for keep, lab in (((0, 1), None), ((2, 3), L('mb'))):
        if lab: E(lab + ':')
        E.set_state(st)
        send = (2, 3) if keep == (0, 1) else (0, 1)
        for f in range(16): E('ds_write_b128 v%d, %s offset:%d' % (vXA, V(vO + 32 * send[0] + 4 * f, 4), 1024 * f))
        E('ds_write_b64 v%d, %s offset:16384' % (vXA, V(vLs + send[0], 2)))
        E(WaitL())
        E('s_barrier')
        E('ds_read_b64 %s, v%d offset:16384' % (V(vLs + send[0], 2), vRD))
        for f in range(16): E('ds_read_b128 %s, v%d offset:%d' % (V(vO + 32 * send[0] + 4 * f, 4), vRD, 1024 * f))
        for k in range(2): E('v_add_f32 v%d, v%d, v%d' % (vLs + keep[k], vLs + keep[k], vLs + send[k]))
        c_rowsum(E, keep)
        E(WaitL())
        for k, q in enumerate(keep):
            for r in range(0, 32, 2):
                E('v_pk_add_f32 %s, %s, %s' % (V(vO + 32 * q + r, 2), V(vO + 32 * q + r, 2), V(vO + 32 * send[k] + r, 2)))
            c_out(E, q)
        if not lab: E('s_branch %s' % L('done'))
    E(L('done') + ':')
    stamp(E, 36)


def c_guarded(E):
    vM, vNG, vAL = 2, 6, 16
    E('L_guard:')
    E('s_waitcnt vmcnt(0) lgkmcnt(0)')
    E('s_barrier')
    E.set_state(([], []))
    E('s_cmp_lt_u32 %s, 2' % S(sW))
    E('s_cbranch_scc1 L_guard_q')
    E('s_sub_u32 %s, 3, %s' % (S(sT0), S(sW)))
    E('s_lshl_b32 %s, %s, 14' % (S(sT0), S(sT0)))
    E('s_add_u32 %s, %s, 0x20000' % (S(sT0), S(sT0)))
    E('v_add_u32 v%d, %s, v%d' % (vT, S(sT0), vL16))
    for f in range(16): E('ds_read_b128 %s, v%d offset:%d' % (V(vQ + 4 * ((f + 1) % 16), 4), vT, 1024 * f))
    E(WaitL())
    E('L_guard_q:')
    c_clear(E)
    for r in range(4):
        E('v_mov_b32 v%d, 0' % (vLs + r)); E('v_mov_b32 v%d, 0' % (vMK + r)); E('v_mov_b32 v%d, 0' % (vNG + r))
        E('v_mov_b32 v%d, %s' % (vM + r, f32(-3e38)))
    E(c_ctx_base(sTB))
    E('s_mov_b32 %s, 0' % S(sIT))
    E('s_mov_b32 %s, %s' % (S(sSRC), S(sKVH)))
    E('L_guard_loop:')
    for f in range(32):
        if f % 4 == 0: E('s_add_u32 %s, %s, %d' % (S(sSO), S(sSRC), 1024 * f))
        E('buffer_load_dwordx4 %s, v%d, %s, %s offen offset:%d %s' % (Ac(4 * f, 4), vL16, S(sWS, 4), S(sSO), 1024 * (f % 4), SC))
    E('s_cmp_lg_u32 %s, %s' % (S(sIT), S(sTB)))
    E('s_cbranch_scc1 L_guard_full')
    E(mask_ops())
    for r in range(4): E('v_mov_b32 v%d, %s' % (vNG + r, NEG))
    E('L_guard_full:')
    E(WaitV())
    for q in range(4):
        for kt in range(4):
            for p in range(4):
                d = V(vS + 4 * kt, 4)
                c = d if p else ('0' if kt < q else V(vMK if kt == q else vNG, 4))
                E('%s %s, %s, %s, %s' % (MF, d, Ac(aK(0, kt, p), 4), V(vQ + 16 * p + 4 * q, 4), c))
        E('v_max3_f32 v%d, v%d, v%d, v%d' % (vAL, vS, vS + 1, vM + q))
        for r in range(2, 16, 2): E('v_max3_f32 v%d, v%d, v%d, v%d' % (vAL, vS + r, vS + r + 1, vAL))
        lane_reduce(E, [vAL], 'v_max_f32')
        E('v_sub_f32 v%d, v%d, v%d' % (vAL + 1, vM + q, vAL))
        E('v_exp_f32 v%d, v%d' % (vAL + 1, vAL + 1))
        E('v_mov_b32 v%d, v%d' % (vM + q, vAL))
        for r in range(16): E('v_sub_f32 v%d, v%d, v%d' % (vS + r, vS + r, vAL))
        for r in range(16): E('v_exp_f32 v%d, v%d' % (vS + r, vS + r))
        E('v_mul_f32 v%d, v%d, v%d' % (vLs + q, vLs + q, vAL + 1))
        for r in range(32): E('v_mul_f32 v%d, v%d, v%d' % (vO + 32 * q + r, vO + 32 * q + r, vAL + 1))
        for r in range(16): E('v_add_f32 v%d, v%d, v%d' % (vLs + q, vLs + q, vS + r))
        for r in range(8): E('v_cvt_pk_bf16_f32 v%d, v%d, v%d' % (vP + r, vS + 2 * r, vS + 2 * r + 1))
        E(c_pv(q, 0, 0))
    E('s_add_u32 %s, %s, 32768' % (S(sSRC), S(sSRC)))
    E('s_add_u32 %s, %s, 1' % (S(sIT), S(sIT)))
    E('s_cmp_le_u32 %s, %s' % (S(sIT), S(sTB)))
    E('s_cbranch_scc1 L_guard_loop')
    c_rowsum(E, range(4), False)
    for q in range(4): c_out(E, q)
    E('s_mov_b64 %s, 0' % S(sBAD, 2))
    E(WaitV())
    E('s_branch L_d_start')


vDV = 2
vDR = 6
vG = 12
vG1 = 20
vDX, vDY = 10, 11
vDZ, vDP = 16, 17
sDT, sDC = 70, 71
sDA, sDB, sDM = 61, 62, 63
sDA2, sDB2 = 72, 73

def d_setup(E):
    t0, t1, t2 = vT, vT + 1, vT + 2
    E('s_sub_u32 %s, 15, %s' % (S(sT0), S(sI)))
    E('s_bitcmp1_b32 s2, 0')
    E('s_cselect_b32 %s, %s, %s' % (S(sT0), S(sT0), S(sI)))
    E('s_lshl_b32 %s, %s, 1' % (S(sT0), S(sT0)))
    E('s_bfe_u32 %s, s2, 0x10002' % S(sT1))
    E('s_add_u32 %s, %s, %s' % (S(sDT), S(sT0), S(sT1)))
    E('s_and_b32 %s, %s, 3' % (S(sT0), S(sH)))
    E('s_lshl_b32 %s, %s, 1' % (S(sT0), S(sT0)))
    E('s_bfe_u32 %s, s2, 0x10001' % S(sT1))
    E('s_add_u32 %s, %s, %s' % (S(sDC), S(sT0), S(sT1)))
    E('s_lshl_b32 %s, %s, 15' % (S(sDM), S(sW)))
    E('s_mul_i32 %s, %s, 56' % (S(sDA), S(sDT)))
    E('s_mul_i32 %s, %s, 14' % (S(sT0), S(sW)))
    E('s_add_u32 %s, %s, %s' % (S(sDA), S(sDA), S(sT0)))
    E('s_lshl_b32 %s, %s, 12' % (S(sDA), S(sDA)))
    E('s_add_u32 %s, %s, %d' % (S(sDA), S(sDA), WS_H))
    E('s_lshl_b32 %s, %s, 15' % (S(sDB), S(sT0)))
    E('s_lshl_b32 %s, %s, 7' % (S(sT1), S(sDC)))
    E('s_add_u32 %s, %s, %s' % (S(sDB), S(sDB), S(sT1)))
    E('s_lshl_b32 %s, %s, 2' % (S(sDA2), S(sDT)))
    E('s_add_u32 %s, %s, %s' % (S(sDA2), S(sDA2), S(sW)))
    E('s_lshl_b32 %s, %s, 17' % (S(sDA2), S(sDA2)))
    E('s_add_u32 %s, %s, %d' % (S(sDA2), S(sDA2), WS_CTX))
    E('s_lshl_b32 %s, %s, 20' % (S(sDB2), S(sW)))
    E('s_add_u32 %s, %s, %s' % (S(sDB2), S(sDB2), S(sT1)))
    E('v_lshrrev_b32 v%d, 3, v0' % t0)
    E('v_bfe_u32 v%d, v0, 1, 2' % t1)
    E('v_lshrrev_b32 v%d, 4, v0' % t2)
    E('v_xor_b32 v%d, v%d, v%d' % (t1, t1, t2))
    E('v_lshlrev_b32 v%d, 5, v%d' % (t1, t1))
    E('v_lshl_add_u32 v%d, v%d, 10, v%d' % (t0, t0, t1))
    E('v_and_b32 v%d, 1, v0' % t1)
    E('v_lshl_add_u32 v%d, v%d, 4, v%d' % (vDV, t1, t0))
    for q in range(1, 4): E('v_add_u32 v%d, %d, v%d' % (vDV + q, 7168 * q, vDV))
    E('v_lshrrev_b32 v%d, 2, v0' % t0)
    E('v_lshlrev_b32 v%d, 7, v%d' % (t0, t0))
    E('v_and_b32 v%d, 3, v0' % t1)
    E('v_lshl_add_u32 v%d, v%d, 3, v%d' % (t0, t1, t0))
    E('v_bfe_u32 v%d, v0, 3, 2' % t2)
    E('v_lshl_add_u32 v%d, v%d, 5, v%d' % (t0, t2, t0))
    E('v_add_u32 v%d, %s, v%d' % (vDR, S(sDM), t0))
    for c in range(1, 4): E('v_xor_b32 v%d, %d, v%d' % (vDR + c, 32 * c, vDR))
    E('s_lshl_b32 %s, %s, 2' % (S(sT0), S(sW)))
    E('s_add_u32 %s, %s, 0x7000' % (S(sT0), S(sT0)))
    E('v_lshl_add_u32 v%d, v%d, 15, %s' % (t0, t1, S(sT0)))
    E('s_or_b32 %s, %s, %s' % (S(sT0), S(sBAD), S(sBAD + 1)))
    E('v_mov_b32 v%d, %s' % (t1, S(sT0)))
    E('ds_write_b32 v%d, v%d' % (t0, t1))


def d_main(E):
    NF, NC = 14, 32
    N = NF + NC
    D = 7
    accA, accB = vO, vO + 64
    def loads(n):
        f = n < NF
        sa, sb = (sDA, sDB) if f else (sDA2, sDB2)
        srd = sWD if f else sWO
        slot = n % 8
        g = ['s_add_u32 m0, %s, %d' % (S(sDM), 4096 * slot)]
        for tt in range(4):
            g.append(I('buffer_load_dwordx4 %s, v%d, %s, %s offen offset:%d %s' % (Ac(16 * slot + 4 * tt, 4), vL16, S(sWS, 4), S(sa), 1024 * tt, SC), ('A', n)))
        for q in range(4):
            g.append(I('buffer_load_dwordx4 v%d, %s, %s offen offset:%d lds' % (vDV + q, S(srd, 4), S(sb), 1024 * q), ('B', n)))
        g += ['s_add_u32 %s, %s, 4096' % (S(sa), S(sa)), 's_add_u32 %s, %s, 32768' % (S(sb), S(sb))]
        return g
    def reads(n):
        return ['ds_read_b64_tr_b16 %s, v%d offset:%d' % (V(vSP + 16 * (n & 1) + 4 * c + 2 * jh, 2), vDR + c, 4096 * (n % 8) + 2048 * jh)
                for c in range(4) for jh in range(2)]
    E(WaitV({'poll'}))
    E(spin(E, 'L_slot', POLL2, vFL + 3, TEST2))
    E('L_d_start:')
    E.set_state(([], [('st', set())] * 16))
    d_setup(E)
    for n in range(D - 1): E(loads(n))
    E('v_mov_b32 v%d, %s' % (vT, S(sDM)))
    E(WaitLV(None, {'st'}))
    E('s_barrier')
    E('ds_read_b128 %s, v%d offset:%d' % (V(vT, 4), vT, 0x7000))
    E('s_lshl_b32 %s, %s, 5' % (S(sT1), S(sI)))
    E('s_add_u32 %s, %s, %s' % (S(sT0), S(sT1), S(sH)))
    E('s_lshl_b32 %s, %s, 10' % (S(sT0), S(sT0)))
    E('s_add_u32 %s, %s, %d' % (S(sT0), S(sT0), WS_F))
    E('s_cmp_lg_u32 %s, 0' % S(sW))
    E('s_cselect_b32 %s, 0x%x, %s' % (S(sT0), WS_SIZE, S(sT0)))
    E('s_lshl_b32 %s, %s, 3' % (S(sT3), S(sW)))
    E('s_add_u32 %s, %s, %s' % (S(sT1), S(sT1), S(sT3)))
    E('s_lshl_b32 %s, %s, 10' % (S(sT1), S(sT1)))
    E('s_add_u32 %s, %s, %d' % (S(sT1), S(sT1), WS_F))
    E('v_and_b32 v%d, 7, v0' % vDP)
    E('v_lshl_add_u32 v%d, v%d, 10, %s' % (vDP, vDP, S(sT1)))
    E('v_mov_b32 v%d, 0' % vDZ)
    E(WaitL())
    E('v_or3_b32 v%d, v%d, v%d, v%d' % (vT, vT, vT + 1, vT + 2))
    E('v_or_b32 v%d, v%d, v%d' % (vT, vT, vT + 3))
    E('v_readfirstlane_b32 %s, v%d' % (S(sT2), vT))
    E('s_cmp_lg_u32 %s, 0' % S(sT2))
    E('s_cbranch_scc1 L_guard')
    E('buffer_store_dword v%d, v%d, %s, %s offen %s' % (vFL + 2, vDZ, S(sWS, 4), S(sT0), SC), 'sig')
    stamp(E, 37)
    E('s_lshl_b32 %s, %s, 8' % (S(sT0), S(sDT)))
    E('s_add_u32 %s, %s, %d' % (S(sT0), S(sT0), WS_G))
    E('v_and_b32 v%d, 15, v0' % vDX)
    E('v_lshlrev_b32 v%d, 2, v%d' % (vDY, vDX))
    for tt in range(4): E('buffer_load_dword v%d, v%d, %s, %s offen offset:%d %s' % (vG + tt, vDY, S(sWS, 4), S(sT0), 64 * tt, SC), 'g')
    E(loads(D - 1))
    E(WaitV({('B', 0)}))
    E(reads(0))
    E(WaitL())
    POLL3 = 'buffer_load_dword v%d, v%d, %s, 0 offen sc1' % (vFL + 3, vDP, S(sWS, 4))
    TEST3 = ['v_cmp_ne_u32 vcc, 1, v%d' % (vFL + 3), 's_cmp_eq_u64 vcc, 0']
    mains = []
    for n in range(N):
        acc = accB if n < NF else accA
        for c in range(4):
            for tt in range(4):
                d = V(acc + 16 * c + 4 * tt, 4)
                mains.append('%s %s, %s, %s, %s' % (MF, d, V(vSP + 16 * (n & 1) + 4 * c, 4), Ac(16 * (n % 8) + 4 * tt, 4), '0' if n in (0, NF) else d))
    st_r = []; st_l = []; st_v = []
    PL = OPT.get('pl', 3)
    for n in range(N):
        if n + D == NF - PL: st_l.append(Op(I(POLL3, 'poll'), 16 * n, 16 * n))
        if n + D == NF: st_l.append(Op([WaitV({'poll'})] + spin(E, 'L_ctx', POLL3, vFL + 3, TEST3) + stamp_ops(38), 16 * n, 16 * n))
        if n + D < N:
            for k, x in enumerate(loads(n + D)): st_l.append(Op(x, 16 * n, min(16 * n + k, 16 * n + 9)))
        if n + 1 < N:
            st_r.append(Op(WaitV({('B', n + 1)}), 16 * n + 9, 16 * n + 9))
            for k, x in enumerate(reads(n + 1)): st_r.append(Op(x, 16 * n + 9, 16 * n + 9 + k // 2))
            st_r.append(Op(WaitL(), 16 * n + 15, 16 * n + 15))
    for tt in range(4): st_v.append(Op('v_sub_f32 v%d, 1.0, v%d' % (vG1 + tt, vG + tt), 16 * NF + 8))
    for c in range(4):
        for tt in range(4):
            for r in range(4):
                a = accB + 16 * c + 4 * tt + r
                st_v.append(Op('v_mul_f32 v%d, v%d, v%d' % (a, vG1 + tt, a), 16 * NF + 8))
    schedule(E, mains, [st_l, st_r, st_v])
    stamp(E, 39)
    E('s_lshl_b32 %s, %s, 12' % (S(sT0), S(sW)))
    E('v_add_u32 v%d, %s, v%d' % (vDY, S(sT0), vL16))
    E('v_lshrrev_b32 v%d, 4, v0' % vDZ)
    E('v_lshlrev_b32 v%d, 10, v%d' % (vT, vDZ))
    E('v_lshl_add_u32 v%d, v%d, 4, v%d' % (vT, vDX, vT))
    E('s_lshl_b32 %s, %s, 14' % (S(sT0), S(sW)))
    E('v_add_u32 v%d, %s, v%d' % (vT, S(sT0), vT))
    E('s_barrier')
    for c in range(4):
        for tt in range(4):
            a = accA + 16 * c + 4 * tt
            for r in range(4): E('v_fma_f32 v%d, v%d, v%d, v%d' % (a + r, vG + tt, a + r, a + 64 + r))
            E('ds_write_b128 v%d, %s offset:%d' % (vDY, V(a, 4), 16384 * tt + 1024 * c))
    E('s_lshl_b32 %s, %s, 2' % (S(sT0), S(sDT)))
    E('s_add_u32 %s, %s, %s' % (S(sT0), S(sT0), S(sW)))
    E('s_lshl_b32 %s, %s, 14' % (S(sT0), S(sT0)))
    E('s_lshl_b32 %s, %s, 7' % (S(sT1), S(sDC)))
    E('s_add_u32 %s, %s, %s' % (S(sT0), S(sT0), S(sT1)))
    E('v_lshlrev_b32 v%d, 5, v%d' % (vDZ, vDZ))
    E('v_lshl_add_u32 v%d, v%d, 10, v%d' % (vDZ, vDX, vDZ))
    E(WaitL())
    E('s_barrier')
    for src in range(4):
        for j in range(4): E('ds_read_b128 %s, v%d offset:%d' % (V(vQ + 16 * src + 4 * j, 4), vT, 4096 * src + 256 * j))
    E(WaitL({('v', vQ + 31)}))
    for r in range(0, 16, 2): E('v_pk_add_f32 %s, %s, %s' % (V(vQ + r, 2), V(vQ + r, 2), V(vQ + 16 + r, 2)))
    E(WaitL())
    for r in range(0, 16, 2): E('v_pk_add_f32 %s, %s, %s' % (V(vQ + 32 + r, 2), V(vQ + 32 + r, 2), V(vQ + 48 + r, 2)))
    for r in range(0, 16, 2): E('v_pk_add_f32 %s, %s, %s' % (V(vQ + r, 2), V(vQ + r, 2), V(vQ + 32 + r, 2)))
    for r in range(8): E('v_cvt_pk_bf16_f32 v%d, v%d, v%d' % (vQ + r, vQ + 2 * r, vQ + 2 * r + 1))
    for k in range(2): E('buffer_store_dwordx4 %s, v%d, %s, %s offen offset:%d' % (V(vQ + 4 * k, 4), vDZ, S(sOUT, 4), S(sT0), 16 * k))


def kernel():
    E = Em(); E.notes = []; E.tailcode = []
    setup_first(E)
    ab_prologue(E)
    E('s_cmp_lg_u32 %s, 0' % S(sNOF))
    E('s_cbranch_scc1 L_ab_noffn')
    st = E.state()
    ab_stream(E, True)
    E('L_c_start:')
    c_main(E)
    d_main(E)
    if STAMPS:
        stamp(E, 40)
        E('s_waitcnt vmcnt(0)')
        stamp(E, 41)
        stamp_flush(E)
    E('s_endpgm')
    E.set_state(st)
    E('L_ab_noffn:')
    ab_stream(E, False)
    E('s_branch L_c_start')
    c_guarded(E)
    for t in E.tailcode:
        E.set_state(([], []))
        E(t)
    E('L_end:')
    E('s_endpgm')
    return E


def finish(E, small=True):
    txt = []
    hdr = open('cdna_kernels/%s.s.ref' % NAME).read().split('\n')
    for l in hdr:
        if not l.startswith(';'): break
        if '@launch' not in l: txt.append(l)
    txt.append('; @launch grid=(256,1,1) block=(256,1,1) lds=163840')
    txt.append('.amdgcn_target "amdgcn-amd-amdhsa--gfx950"')
    if small: txt.append(MACROS)
    txt.append('.text')
    ins, n = hazard_pass(E.out, verbose=VERBOSE)
    sys.stderr.write('%d instructions, %d nops inserted, %d auto waits; %s\n' % (len(ins), n, len(E.auto_waits), '; '.join(E.notes)))
    if VERBOSE:
        for w in E.auto_waits: sys.stderr.write('   auto wait before %s\n' % (w,))
    txt.append('.globl %s\n.p2align 8\n.type %s,@function\n%s:' % (KN, KN, KN))
    txt.append(render(ins, small))
    txt.append('.section .rodata,"a"')
    txt.append('.p2align 6\n.amdhsa_kernel %s\n  .amdhsa_next_free_vgpr 512\n  .amdhsa_next_free_sgpr 102\n'
               '  .amdhsa_accum_offset 256\n  .amdhsa_group_segment_fixed_size 0\n  .amdhsa_kernarg_size 112\n'
               '  .amdhsa_user_sgpr_count 2\n  .amdhsa_user_sgpr_kernarg_segment_ptr 1\n'
               '  .amdhsa_system_sgpr_workgroup_id_x 1\n  .amdhsa_float_denorm_mode_32 3\n.end_amdhsa_kernel' % KN)
    return '\n'.join(txt) + '\n'


VERBOSE = False
if __name__ == '__main__':
    VERBOSE = '-v' in sys.argv
    STAMPS = '-s' in sys.argv
    for a in sys.argv[2:]:
        if '=' in a:
            k, v = a.split('='); OPT[k] = v if (not v or v[0].isalpha()) else (float(v) if '.' in v else int(v))
    open(sys.argv[1], 'w').write(finish(kernel(), '-l' not in sys.argv))
```

```python
import sys, math, struct
from core import *

NAME = 'gated_mix__compressed_kv_cla__glu_gated_glu__prompt'
KN = NAME + '_kernel'
MF = 'v_mfma_f32_16x16x32_bf16'
MB = 1 << 20
SC = 'sc1'

WS_KV = 0
WS_CTX = 32 * MB
WS_H = 48 * MB
WS_G = 56 * MB
WS_F = 57 * MB
WS_P = 58 * MB
WS_T = 75 * MB
WS_SIZE = 76 * MB

sX, sC, sWQ, sWK, sWV, sWO, sWG, sWU, sWD, sGW, sOUT, sWS, sDBG = [4 + 4 * i for i in range(13)]
sH, sI, sW, sFC = 56, 57, 58, 59
sTB = 60
sNX, sD8, sD16, sCTX = 61, 62, 63, 64
sT0, sT1, sT2, sT3 = 65, 66, 67, 68
sSO = 69
sM0W, sM0A = 70, 71
sHC, sFB = 72, 73
sNEED = 74
sST = 75
sQS, sNL = 76, 77
sROWC, sROWX = 78, 79
sNOF = 80
sIT, sTD, sTI = 81, 82, 83
sSRC = 84
sKVH = 85
sNUL = 88
sE0 = 92
sBAD = 94
sB = [96, 97, 98, 99]
sHB = [0, 1]

vL16 = 1
vWR = 2
vAR = 6
vDW, vDF = 8, 9
vDA = 10
vPF = 12
vFL = 16
vWR2 = 20
vT = 24
vDUM = 28
vSP = 32
vQ = 64
vO = 128
vRD = 6
vQA = 10
vXA = 11
vMK = 12
vLs = 20
vS = vSP
vP = vSP + 16

OPT = dict(nt=0, pfl='c-2,k-1,x18.1,g23,u24,d88,o92', pf=1, wspan=4.0, xspan=2.5, kst=28, vst=16, forcebad=0)
def f32(x): return '0x%08x' % struct.unpack('<I', struct.pack('<f', x))[0]
NEG = f32(-1e30)
L_LO, L_HI = f32(2.0 ** -40), f32(2.0 ** 40)

STAMPS = False
def stamp_ops(k):
    if not STAMPS: return []
    return ['s_memtime s[100:101]', 's_memrealtime s[86:87]', 's_waitcnt lgkmcnt(0)',
            'v_writelane_b32 v30, s100, %s' % k, 'v_writelane_b32 v31, s86, %s' % k]
def stamp(E, k):
    E(stamp_ops(k))
def stamp_flush(E):
    if not STAMPS: return
    E('s_lshl_b32 s3, s2, 2')
    E('s_add_u32 s3, s3, %s' % S(sW))
    E('s_lshl_b32 s3, s3, 9')
    E('s_add_u32 s3, s3, %d' % WS_T)
    E('v_lshlrev_b32 v29, 3, v0')
    E('buffer_store_dwordx2 v[30:31], v29, %s, s3 offen' % S(sWS, 4), 'stamp')


def spin(E, name, load, reg, test):
    E.tailcode.append([name + '_spin:', 's_add_u32 s3, s3, 1', 's_cmp_gt_u32 s3, 0x200000', 's_cbranch_scc1 %s_back' % name,
                       load, 's_waitcnt vmcnt(0)'] + test + ['s_cbranch_scc0 %s_spin' % name, 's_branch %s_back' % name])
    return test + ['s_cbranch_scc0 %s_spin' % name, name + '_back:']


def setup_first(E):
    E('s_cmp_ge_u32 s2, 256')
    E('s_cbranch_scc1 L_end')
    tab = [(sC, 8, 2 * MB), (sWK, 24, 4 * MB), (sWS, 104, WS_SIZE), (sX, 0, 2 * MB), (sWQ, 16, 4 * MB), (sWV, 32, 4 * MB), (sWO, 40, 4 * MB),
           (sWG, 56, 1835008), (sWU, 64, 1835008), (sWD, 72, 1835008), (sGW, 80, 1024), (sOUT, 88, 2 * MB), (sDBG, 96, 256)]
    for s, off, sz in tab: E('s_load_dwordx2 %s, s[0:1], %d' % (S(s, 2), off))
    E('v_lshrrev_b32 v1, 6, v0')
    E('v_and_b32 v0, 63, v0')
    E('v_readfirstlane_b32 %s, v1' % S(sW))
    E('v_lshlrev_b32 v%d, 4, v0' % vL16)
    stamp(E, 0)
    E('s_lshr_b32 %s, s2, 3' % S(sT1))
    if OPT['pf']:
        E('s_getpc_b64 %s' % S(sE0, 2))
        E('s_and_b32 %s, %s, 0xffffff00' % (S(sE0), S(sE0)))
        E('s_lshl_b32 %s, %s, 2' % (S(sT0), S(sT1)))
        E('s_add_u32 %s, %s, %s' % (S(sT0), S(sT0), S(sW)))
        E('s_min_u32 %s, %s, (L_end-%s)/1024-2' % (S(sT0), S(sT0), KN))
        E('s_lshl_b32 %s, %s, 10' % (S(sT0), S(sT0)))
        E('v_add_u32 v%d, %s, v%d' % (vT, S(sT0), vL16))
        E('global_load_dword v%d, v%d, %s' % (vDUM, vT, S(sE0, 2)), 'pfx')
    for s, off, sz in tab:
        E('s_mov_b32 %s, 0x%x' % (S(s + 2), sz))
        E('s_mov_b32 %s, 0x20000' % S(s + 3))
    E('s_and_b32 %s, s2, 7' % S(sT0))
    E('s_and_b32 %s, %s, 3' % (S(sT2), S(sT1)))
    E('s_lshr_b32 %s, %s, 2' % (S(sI), S(sT1)))
    E('s_lshl_b32 %s, %s, 2' % (S(sH), S(sT0)))
    E('s_add_u32 %s, %s, %s' % (S(sH), S(sH), S(sT2)))
    E('s_lshl_b32 %s, %s, 8' % (S(sHC), S(sH)))
    E('s_lshl_b32 %s, %s, 2' % (S(sT1), S(sI)))
    E('s_add_u32 %s, %s, %s' % (S(sT1), S(sT1), S(sW)))
    E('s_lshl_b32 %s, %s, 16' % (S(sROWC), S(sT1)))
    E('s_lshl_b32 %s, %s, 20' % (S(sKVH), S(sH)))
    E('s_lshl_b32 %s, %s, 15' % (S(sST), S(sT1)))
    E('s_add_u32 %s, %s, %s' % (S(sST), S(sST), S(sKVH)))
    E('s_lshr_b32 %s, %s, 1' % (S(sT1), S(sW)))
    E('s_lshl_b32 %s, %s, 3' % (S(sT1), S(sT1)))
    E('s_and_b32 %s, %s, 1' % (S(sT3), S(sW)))
    E('s_add_u32 %s, %s, %s' % (S(sT1), S(sT1), S(sT3)))
    E('s_lshl_b32 %s, %s, 10' % (S(sM0W), S(sT1)))
    E('s_lshl_b32 %s, %s, 14' % (S(sD16), S(sW)))
    E('s_add_u32 %s, %s, %d' % (S(sM0A), S(sD16), 96 * 1024))
    t0, t1, t2, t3 = vT, vT + 1, vT + 2, vT + 3
    E('s_lshl_b32 %s, s2, 2' % S(sSO))
    E('s_add_u32 %s, %s, %s' % (S(sSO), S(sSO), S(sW)))
    E('s_lshl_b32 %s, %s, 11' % (S(sSO), S(sSO)))
    E('v_lshl_add_u32 v%d, v0, 5, %s' % (vPF, S(sSO)))
    E('v_lshrrev_b32 v%d, 3, v0' % t0)
    E('v_and_b32 v%d, 7, v0' % t1)
    E('v_lshrrev_b32 v%d, 4, v0' % t2)
    E('v_xor_b32 v%d, v%d, v%d' % (t1, t1, t2))
    E('v_lshlrev_b32 v%d, 4, v%d' % (t1, t1))
    E('v_lshl_add_u32 v%d, v%d, 10, v%d' % (vDA, t0, t1))
    E('v_xor_b32 v%d, 64, v%d' % (vDA + 1, vDA))
    E('s_lshl_b32 %s, %s, 3' % (S(sT1), S(sT1)))
    E('v_add_u32 v%d, %s, v%d' % (t0, S(sT1), t0))
    E('v_bfe_u32 v%d, v0, 1, 2' % t1)
    E('v_bfe_u32 v%d, v0, 4, 1' % t2)
    E('s_lshl_b32 %s, %s, 1' % (S(sT3), S(sT3)))
    E('v_or_b32 v%d, %s, v%d' % (t2, S(sT3), t2))
    E('v_xor_b32 v%d, v%d, v%d' % (t1, t1, t2))
    E('v_and_b32 v%d, 1, v0' % t2)
    E('v_lshlrev_b32 v%d, 4, v%d' % (t2, t2))
    E('v_lshl_add_u32 v%d, v%d, 5, v%d' % (t1, t1, t2))
    E('v_lshl_add_u32 v%d, v%d, 13, v%d' % (vDW, t0, t1))
    E('v_mul_u32_u24 v%d, 3584, v%d' % (t0, t0))
    E('v_add_u32 v%d, v%d, v%d' % (vDF, t0, t1))
    E('s_waitcnt lgkmcnt(0)')


def setup_rest(E):
    t0, t1, t2, t3 = vT, vT + 1, vT + 2, vT + 3
    E('v_lshlrev_b32 v%d, 1, v%d' % (vPF + 1, vPF))
    E('s_lshr_b32 %s, s2, 3' % S(sT1))
    E('s_lshl_b32 %s, %s, 2' % (S(sT1), S(sT1)))
    E('s_add_u32 %s, %s, %s' % (S(sT1), S(sT1), S(sW)))
    E('s_lshl_b32 %s, %s, 15' % (S(sT1), S(sT1)))
    E('s_lshl_b32 %s, %s, 10' % (S(sT3), S(sT0)))
    E('s_add_u32 %s, %s, %s' % (S(sT1), S(sT1), S(sT3)))
    E('v_lshrrev_b32 v%d, 4, v0' % t2)
    E('v_and_b32 v%d, 15, v0' % t0)
    E('v_lshlrev_b32 v%d, 6, v%d' % (t1, t0))
    E('v_lshl_add_u32 v%d, v%d, 13, v%d' % (t1, t2, t1))
    E('v_add_u32 v%d, %s, v%d' % (vPF + 2, S(sT1), t1))


def setup_rest2(E):
    t0, t1, t2, t3 = vT, vT + 1, vT + 2, vT + 3
    E('s_lshl_b32 %s, %s, 5' % (S(sT1), S(sI)))
    E('s_add_u32 %s, %s, %s' % (S(sT1), S(sT1), S(sH)))
    E('s_lshl_b32 %s, %s, 10' % (S(sT1), S(sT1)))
    E('s_add_u32 %s, %s, %d' % (S(sT1), S(sT1), WS_F))
    E('s_cmp_lg_u32 %s, 0' % S(sW))
    E('s_cselect_b32 %s, 0x%x, %s' % (S(sT1), WS_SIZE, S(sT1)))
    E('v_mov_b32 v%d, 0' % t3)
    E('buffer_store_dword v%d, v%d, %s, %s offen %s' % (t3, vL16, S(sWS, 4), S(sT1), SC), 'st')
    E('v_lshrrev_b32 v%d, 1, v%d' % (t1, t0))
    E('v_xor_b32 v%d, v%d, v%d' % (t1, t1, t2))
    E('v_lshlrev_b32 v%d, 4, v%d' % (t1, t1))
    E('v_lshl_add_u32 v%d, v%d, 7, v%d' % (t1, t0, t1))
    E('v_add_u32 v%d, %s, v%d' % (vAR, S(sM0A), t1))
    E('v_xor_b32 v%d, 64, v%d' % (vAR + 1, vAR))
    E('v_bfe_u32 v%d, v0, 2, 2' % t0)
    E('v_lshl_add_u32 v%d, v%d, 3, v%d' % (t1, t2, t0))
    E('v_lshlrev_b32 v%d, 7, v%d' % (t1, t1))
    E('v_and_b32 v%d, 3, v0' % t2)
    E('v_lshl_add_u32 v%d, v%d, 3, v%d' % (t1, t2, t1))
    E('v_bfe_u32 v%d, v0, 3, 2' % t0)
    E('v_lshl_add_u32 v%d, v%d, 5, v%d' % (vWR, t0, t1))
    for c in range(1, 4): E('v_xor_b32 v%d, %d, v%d' % (vWR + c, 32 * c, vWR))
    for c in range(4): E('v_add_u32 v%d, 0x10000, v%d' % (vWR2 + c, vWR + c))
    E('s_sub_u32 %s, 15, %s' % (S(sT3), S(sI)))
    E('s_cmp_lt_u32 %s, 2' % S(sW))
    E('s_cselect_b32 %s, %s, %s' % (S(sT3), S(sT3), S(sI)))
    E('s_lshl_b32 %s, %s, 1' % (S(sT3), S(sT3)))
    E('s_and_b32 %s, %s, 1' % (S(sTB), S(sW)))
    E('s_add_u32 %s, %s, %s' % (S(sTB), S(sTB), S(sT3)))
    E('s_lshl_b32 %s, %s, 16' % (S(sROWX), S(sTB)))
    E('s_lshr_b32 %s, %s, 1' % (S(sT1), S(sT0)))
    E('s_mul_i32 %s, %s, 7' % (S(sT1), S(sT1)))
    E('s_and_b32 %s, %s, 1' % (S(sT0), S(sT0)))
    E('s_lshl_b32 %s, %s, 2' % (S(sFC), S(sT0)))
    E('s_add_u32 %s, %s, %s' % (S(sFC), S(sFC), S(sT2)))
    E('s_cmp_eq_u32 %s, 3' % S(sT2))
    E('s_cselect_b32 %s, 3, %s' % (S(sFC), S(sFC)))
    E('s_add_u32 %s, %s, %s' % (S(sFC), S(sFC), S(sT1)))
    E('s_lshl_b32 %s, %s, 7' % (S(sFB), S(sFC)))
    E('s_lshr_b32 %s, %s, 2' % (S(sT1), S(sI)))
    E('s_xor_b32 %s, %s, %s' % (S(sT1), S(sT1), S(sT0)))
    E('s_cmp_eq_u32 %s, 3' % S(sT2))
    E('s_cselect_b32 %s, %s, 0' % (S(sNOF), S(sT1)))
    E('s_mov_b32 %s, %s' % (S(sQS), f32(math.log2(math.e) / math.sqrt(128.0))))
    E('s_mov_b32 %s, %s' % (S(sNL), f32(-math.log2(math.e))))
    for k in range(4): E('s_add_u32 %s, %s, %d' % (S(sB[k]), S(sST), 4096 * k))
    E('s_mul_i32 %s, %s, 28' % (S(sHB[0]), S(sTB)))
    E('s_add_u32 %s, %s, %s' % (S(sHB[0]), S(sHB[0]), S(sFC)))
    E('s_lshl_b32 %s, %s, 13' % (S(sHB[0]), S(sHB[0])))
    E('s_add_u32 %s, %s, %d' % (S(sHB[0]), S(sHB[0]), WS_H))
    E('s_add_u32 %s, %s, 4096' % (S(sHB[1]), S(sHB[0])))
    E('v_cmp_eq_u32 vcc, 0, v0')
    E('v_mov_b32 v%d, 0x1000' % t0)
    E('s_lshl_b32 %s, %s, 2' % (S(sT1), S(sH)))
    E('s_cmp_eq_u32 %s, 0' % S(sW))
    E('s_cselect_b32 %s, %s, 0x1000' % (S(sT1), S(sT1)))
    E('s_cselect_b32 %s, 8, 0' % S(sNEED))
    E('v_mov_b32 v%d, %s' % (t1, S(sT1)))
    E('v_cndmask_b32 v%d, v%d, v%d, vcc' % (vFL, t0, t1))
    E('s_lshl_b32 %s, %s, 2' % (S(sT1), S(sI)))
    E('s_add_u32 %s, %s, 128' % (S(sT1), S(sT1)))
    E('v_mov_b32 v%d, %s' % (t1, S(sT1)))
    E('v_cndmask_b32 v%d, v%d, v%d, vcc' % (vFL + 1, t0, t1))
    E('v_mov_b32 v%d, 1' % (vFL + 2))
    E('s_lshl_b32 %s, %s, 13' % (S(sD8), S(sW)))
    E('s_add_u32 %s, %s, %s' % (S(sSRC), S(sKVH), S(sD8)))
    E('s_add_u32 %s, %s, 0x8000' % (S(sD8), S(sD8)))
    E('s_mov_b32 %s, %s' % (S(sNUL), S(sWS)))
    E('s_mov_b32 %s, %s' % (S(sNUL + 1), S(sWS + 1)))
    E('s_mov_b32 %s, 0x%x' % (S(sNUL + 2), 32 * MB))
    E('s_mov_b32 %s, 0x20000' % S(sNUL + 3))
    E('s_sub_u32 %s, %s, 2' % (S(sT0), S(sW)))
    E('s_cmp_lt_u32 %s, 2' % S(sW))
    E('s_cselect_b32 %s, 2, %s' % (S(sT0), S(sT0)))
    E('s_lshl_b32 %s, %s, 1' % (S(sTI), S(sI)))
    E('s_add_u32 %s, %s, %s' % (S(sTD), S(sTI), S(sT0)))
    E('s_add_u32 %s, %s, 1' % (S(sNX), S(sTI)))
    E('s_mov_b32 %s, 0' % S(sIT))
    E('s_mov_b32 s3, 0')
    E('s_mov_b64 %s, 0' % S(sBAD, 2))
    E(c_ctx_base(sTB))


def pf(srd, kind):
    return I('buffer_load_dword v%d, v%d, %s, 0 offen%s' % (vDUM, vPF + kind, S(srd, 4), ' nt' if (OPT['nt'] and kind == 2) else ''), 'pfx')
PFT = dict(c=(sC, 0), x=(sX, 0), k=(sWK, 2), v=(sWV, 2), q=(sWQ, 2), g=(sWG, 0), u=(sWU, 0), d=(sWD, 0), o=(sWO, 1))
def pf_list(): return [(t[0], float(t[1:])) for t in OPT['pfl'].split(',') if t]


def w_dma(kind, s, slot, si):
    if kind in 'KV':
        srd = [sWK if kind == 'K' else sWV] * 2; pitch = 8192; vo = vDW; base = sHC
        org = [128 * s * pitch, 128 * s * pitch + 128]
    elif kind == 'F':
        srd = [sWG, sWU]; pitch = 3584; vo = vDF; base = sFB
        org = [128 * s * pitch] * 2
    else:
        srd = [sWQ] * 2; pitch = 8192; vo = vDW; base = sHC
        org = [128 * (2 * s + p) * pitch + 128 * int(kind[1]) for p in range(2)]
    return [['s_add_u32 m0, %s, %d' % (S(sM0W), slot * 32768 + p * 16384 + a * 2048),
             's_add_u32 %s, %s, %d' % (S(sSO), S(base), org[p] + a * 16 * pitch),
             I('buffer_load_dwordx4 v%d, %s, %s offen %slds' % (vo, S(srd[p], 4), S(sSO), 'nt ' if (OPT['nt'] and kind != 'F') else ''), ('W', si))]
            for p in range(2) for a in range(4)]

def a_dma(which, n):
    srd, row = (sC, sROWC) if which == 'c' else (sX, sROWX)
    return [['s_add_u32 m0, %s, %d' % (S(sM0A), (n & 1) * 8192 + q * 1024),
             's_add_u32 %s, %s, %d' % (S(sSO), S(row), n * 128 + q * 8192),
             I('buffer_load_dwordx4 v%d, %s, %s offen lds' % (vDA + (q & 1), S(srd, 4), S(sSO)), (which, n))] for q in range(8)]

def a_reads(n):
    return ['ds_read_b128 %s, v%d offset:%d' % (Ac(16 * (2 * n + kk) + 4 * tt, 4), vAR + kk, (n & 1) * 8192 + tt * 2048)
            for tt in range(4) for kk in range(2)]
def a_regs(n): return {('a', r) for r in range(32 * n, 32 * n + 32)}
def frag(B, kk): return vSP + 16 * (B & 1) + 4 * kk
def w_reads(B, b):
    slot = (B >> 3) % 3
    base = (vWR2 if slot == 2 else vWR) + b['c']
    off = (slot & 1) * 32768 + b['pan'] * 16384
    return ['ds_read_b64_tr_b16 %s, v%d offset:%d' % (V(frag(B, kk) + 2 * jh, 2), base, off + kk * 4096 + jh * 512)
            for kk in range(4) for jh in range(2)]

def ab_prologue(E):
    pfl = pf_list()
    for n, t in pfl:
        if t == -2: E([pf(*PFT[n])])
    for g in a_dma('c', 0): E(g)
    w0 = w_dma('K', 0, 0, 0)
    for g in w0[:4]: E(g)
    for g in a_dma('c', 1): E(g)
    for g in w0[4:]: E(g)
    for g in w_dma('K', 1, 1, 1): E(g)
    setup_rest(E)
    for n, t in pfl:
        if t == -1: E([pf(*PFT[n])])
    setup_rest2(E)
    E(WaitV({('c', 0)}))
    E(a_reads(0))
    E(WaitV({('c', 1)}))
    E(a_reads(1))
    E(WaitL(a_regs(0)))
    for g in a_dma('c', 2): E(g)
    E(WaitV({('W', 0)}))
    E('s_barrier')
    E(w_reads(0, dict(c=0, pan=0)))
    E(WaitL())
    stamp(E, 1)


def c_vsetup(dummy):
    t0, t1 = vT, vT + 1
    ops = ['v_add_u32 v%d, 0x8000, v%d' % (vRD, vL16), 'v_add_u32 v%d, 0x18000, v%d' % (vRD + 1, vL16),
           's_lshr_b32 %s, %s, 1' % (S(sT0), S(sW)), 's_xor_b32 %s, %s, %s' % (S(sT0), S(sT0), S(sW)),
           's_and_b32 %s, %s, 1' % (S(sT0), S(sT0)), 's_lshl_b32 %s, %s, 14' % (S(sT0), S(sT0)),
           's_add_u32 %s, %s, 0x20000' % (S(sT1), S(sT0)), 'v_add_u32 v%d, %s, v%d' % (vQA, S(sT1), vL16),
           's_lshr_b32 %s, %s, 1' % (S(sT0), S(sW)), 's_mul_i32 %s, %s, %d' % (S(sT0), S(sT0), 0x20000 - dummy),
           'v_subrev_u32 v%d, %s, v%d' % (vXA, S(sT0), vQA)]
    ops += mask_ops()
    return ops

def mask_ops():
    t0, t1 = vT, vT + 1
    ops = ['v_lshrrev_b32 v%d, 4, v0' % t0, 'v_lshlrev_b32 v%d, 2, v%d' % (t0, t0), 'v_and_b32 v%d, 15, v0' % t1,
           'v_sub_u32 v%d, v%d, v%d' % (t0, t1, t0)]
    for r in range(4):
        ops += ['v_subrev_u32 v%d, %d, v%d' % (t1, r, t0), 'v_ashrrev_i32 v%d, 31, v%d' % (t1, t1), 'v_and_b32 v%d, %s, v%d' % (vMK + r, NEG, t1)]
    return ops

POLL1 = 'buffer_load_dword v%d, v%d, %s, 0 offen sc1' % (vFL + 3, vFL, S(sDBG, 4))
TEST1 = ['v_readfirstlane_b32 %s, v%d' % (S(sT2), vFL + 3), 's_cmp_ge_u32 %s, %s' % (S(sT2), S(sNEED))]


def ab_stream(E, ffn):
    stages = []
    for s in range(4): stages.append(('K', s))
    for s in range(4): stages.append(('V', s))
    if ffn:
        for s in range(4): stages.append(('F', s))
    for hf in range(2):
        for s in range(2): stages.append(('Q%d' % hf, s))
    NS = len(stages)
    NB = 8 * NS
    END = 16 * NB

    def blocks(si):
        kind, s = stages[si]
        out = []
        for b in range(8):
            if kind in 'KV': out.append(dict(pan=b >> 2, c=b & 3, ap=s, acc=vO + 16 * b, first=s == 0, swap=kind == 'V'))
            elif kind == 'F': out.append(dict(pan=b & 1, c=b >> 1, ap=s, acc=vO + 16 * b, first=s == 0, swap=False))
            else:
                base = vQ if kind == 'Q0' else vO
                out.append(dict(pan=b & 1, c=b >> 1, ap=2 * s + (b & 1), acc=base + 16 * (b >> 1), first=(s == 0 and (b & 1) == 0), swap=False))
        return out
    blk = [b for si in range(NS) for b in blocks(si)]

    mains = []
    for B, b in enumerate(blk):
        for tt in range(4):
            for kk in range(4):
                w = V(frag(B, kk), 4); x = Ac(16 * (4 * b['ap'] + kk) + 4 * tt, 4)
                acc = V(b['acc'] + 4 * tt, 4)
                c = '0' if (b['first'] and kk == 0) else acc
                mains.append('%s %s, %s, %s, %s' % (MF, acc, x if b['swap'] else w, w if b['swap'] else x, c))

    SIG = 11
    st_w = []
    for B in range(NB - 1):
        for k, r in enumerate(w_reads(B + 1, blk[B + 1])): st_w.append(Op(r, 16 * B, 16 * B + k + 3))
        need = {('v', r) for r in range(frag(B + 1, 0), frag(B + 1, 0) + 16)} | {('a', r) for r in range(64 * blk[B + 1]['ap'], 64 * blk[B + 1]['ap'] + 64)}
        g = 16 * B + 15
        if (B + 2) % 8 == 0 and B + 2 < NB:
            s = (B + 2) // 8
            tags = {('W', s)}
            if s == SIG: tags |= {'st'}
            if ffn and s == 14: tags |= {'poll'}
            if ffn and s == 15: tags |= {'kv0'}
            st_w.append(Op(WaitLV(need, tags), g, g))
            if ffn and s == 14: st_w.append(Op(spin(E, 'L_kv1', POLL1, vFL + 3, TEST1), g, g))
            st_w.append(Op('s_barrier', g, g))
            for x in stamp_ops(1 + s + (0 if ffn or s < 8 else 4)): st_w.append(Op(x, g, g))
        else:
            st_w.append(Op(WaitL(need), g, g))

    ev = []
    INF = 1 << 30
    for si in range(2, NS):
        t0 = max(8 * (si - 2) - 1, 0)
        for k, g in enumerate(w_dma(stages[si][0], stages[si][1], si % 3, si)):
            ev.append((t0 + k * (7.0 / 8 if si <= 4 else OPT['wspan'] / 8), 0, g, INF))
    def act(which, n, t_dma, span, t_rd):
        for k, g in enumerate(a_dma(which, n)):
            if k == 0: g = [WaitL(a_regs((n - 2) % 8))] + g
            ev.append((t_dma + k * span / 8.0, 1, g, INF))
        act_rd(which, n, t_rd)
    def act_rd(which, n, t_rd):
        for k, r in enumerate(a_reads(n)):
            if which == 'c': use = 8 * (n >> 1)
            elif ffn: use = 8 * (8 + (n >> 1))
            else: use = 8 * (8 + (n >> 2)) + ((n >> 1) & 1)
            ev.append((t_rd + k * 0.2, 2, ([WaitV({(which, n)})] if k == 0 else []) + [r], 16 * use - 6 - (7 - k)))
    act_rd('c', 2, 3.0)
    act('c', 3, 0, 2, 5.0)
    act('c', 4, 5.0, 3.0, 11)
    act('c', 5, 8, 2.0, 13.0)
    act('c', 6, 13.0, 3.0, 19)
    act('c', 7, 16, 2.0, 21.0)
    step = 6 if ffn else 4
    for n in range(8):
        T = 40 + step * n
        act('x', n, T - 2 * step + 2.1, OPT['xspan'], T)
    tpf = 0
    for n, t in pf_list():
        if t >= 0:
            t = t if ffn else min(t, 72)
            ev.append((t, 3, [pf(*PFT[n])], INF)); tpf = max(tpf, t)
    ev.append((8 * SIG - 1, -1, [I('buffer_atomic_add v%d, v%d, %s, 0 offen sc1' % (vFL + 2, vFL, S(sDBG, 4)), 'sig')], INF))
    if ffn:
        ev.append((102, 3, [I(POLL1, 'poll')], INF))
        for par in range(2):
            for k, g in enumerate(c_dma(par, 8, 'kv%d' % par, 32768 * par)):
                ev.append((111 + 2 * par + k * 0.25, 1, g, INF))
        for k, r in enumerate(c_reads(0)): ev.append((120 + k * 0.22, 2, [r], END - 5))
    ev.sort(key=lambda e: (e[0], e[1]))
    st_m = []
    for t, _, g, hard in ev:
        lo = int(t * 16)
        for k, x in enumerate(g):
            last = k == len(g) - 1
            isw = isinstance(x, (WaitL, WaitV))
            st_m.append(Op(x, lo if (last or isw) else None, min(lo + 24, hard) if last else None))

    eps = [[] for _ in range(4)]
    def cvt(d, a): return 'v_cvt_pk_bf16_f32 v%d, v%d, v%d' % (d, a, a + 1)
    def store(r, base, off, tag='st'):
        return I('buffer_store_dwordx4 %s, v%d, %s, %s offen offset:%d %s' % (V(r, 4), vL16, S(sWS, 4), S(base), off, SC), tag)
    def pack(d, a, b): return [cvt(d, a), cvt(d + 1, a + 2), cvt(d + 2, b), cvt(d + 3, b + 2)]
    def clr(r): return 'v_mov_b64 %s, 0' % V(r, 2)
    LAT = 2
    def done(si, b, tt): return 16 * (8 * si + b) + 4 * tt + 3 + LAT
    st_o = []
    kst, vst = OPT['kst'], OPT['vst']
    for p in range(4):
        for tt in range(4):
            a = vO + 16 * (2 * p) + 4 * tt; b = vO + 16 * (2 * p + 1) + 4 * tt
            d = vQ + 16 * p + 4 * tt
            ops = pack(d, a, b)
            hi = done(3, 2 * p + 1, tt) + 40
            eps[tt].append(Op(ops[0], done(3, 2 * p, tt))); eps[tt].append(Op(ops[1]))
            eps[tt].append(Op(ops[2], done(3, 2 * p + 1, tt))); eps[tt].append(Op(ops[3], None, hi))
            n = 4 * p + tt
            lo = max(hi + 1, 16 * 28 + kst * n)
            st_o.append(Op(store(d, sB[tt], p * 1024), lo, lo + 20))
    for k in range(4): st_o.append(Op('s_add_u32 %s, %s, %d' % (S(sB[k]), S(sST), 16384 + 4096 * k)))
    for c in range(8):
        for ks in range(2):
            a = vO + 16 * c + 8 * ks; b = a + 4
            n = 2 * c + ks
            d = (vQ + 4 * n) if ffn else a
            ops = pack(d, a, b)
            e = eps[2 * (c & 1) + ks]
            hi = done(7, c, 2 * ks + 1) + 40
            assert 16 * 28 + kst * n + 22 < done(7, c, 2 * ks)
            e.append(Op(ops[0], done(7, c, 2 * ks))); e.append(Op(ops[1]))
            e.append(Op(ops[2], done(7, c, 2 * ks + 1))); e.append(Op(ops[3], None, hi))
            lo = max(hi + 1, 16 * 60 + (vst if ffn else min(vst, 16)) * n)
            st_o.append(Op(store(d, sB[c >> 1], ((c & 1) * 2 + ks) * 1024), lo, lo + 20))
            assert lo + 22 < min(16 * 8 * (12 if ffn else 10), 16 * (8 * SIG - 1) - 1)
    q0 = 12 if ffn else 8
    if ffn:
        for fs in range(2):
            for tt in range(4):
                e = eps[tt]
                d = vO + 16 * (4 * fs) + 4 * tt
                for t in range(2):
                    g = vO + 16 * (4 * fs + 2 * t) + 4 * tt; u = g + 16
                    for r0 in (0, 2):
                        rs = (r0, r0 + 1)
                        for r in rs: e.append(Op('v_mul_f32 v%d, %s, v%d' % (g + r, S(sNL), g + r), done(11, 4 * fs + 2 * t, tt)))
                        for r in rs: e.append(Op('v_exp_f32 v%d, v%d' % (g + r, g + r)))
                        for r in rs: e.append(Op('v_add_f32 v%d, 1.0, v%d' % (g + r, g + r)))
                        for r in rs: e.append(Op('v_rcp_f32 v%d, v%d' % (g + r, g + r)))
                        for r in rs: e.append(Op('v_mul_f32 v%d, v%d, v%d' % (g + r, g + r, u + r), done(11, 4 * fs + 2 * t + 1, tt)))
                        e.append(Op(cvt(d + 2 * t + r0 // 2, g + r0)))
                e.append(Op(store(d, sHB[fs], tt * 1024, 'hst'), None, (16 * 8 * 14 - 2) if fs == 0 else 16 * 118))
                if fs == 1:
                    for b in (5, 6, 7, 4):
                        for r in (0, 2): e.append(Op(clr(vO + 16 * b + 4 * tt + r)))
    qs = [[] for _ in range(4)]
    for hf in range(2):
        base = vQ if hf == 0 else vO
        si = q0 + 2 * hf + 1
        for p in range(2):
            for tt in range(4):
                e = qs[tt]
                d = vQ + 16 * (2 * hf + p) + 4 * tt
                for t in range(2):
                    a = base + 16 * (2 * p + t) + 4 * tt
                    for r in range(4): e.append(Op('v_mul_f32 v%d, %s, v%d' % (a + r, S(sQS), a + r), done(si, 2 * (2 * p + t) + 1, tt)))
                    e.append(Op(cvt(d + 2 * t, a))); e.append(Op(cvt(d + 2 * t + 1, a + 2)))
                    if ffn and hf == 1:
                        for r in (0, 2): e.append(Op(clr(a + r)))
                if ffn:
                    wr = lambda pp: 'ds_write_b128 v%d, %s offset:%d' % (vXA, V(vQ + 16 * pp + 4 * tt, 4), 1024 * (4 * pp + tt))
                    if hf == 0 and p == 1:
                        e.append(Op(wr(0), 16 * 119)); e.append(Op(wr(1)))
                    if hf == 1: e.append(Op(wr(2 + p)))
    st_c = []
    if ffn:
        lo = 16 * max(88, int(tpf) + 3)
        for x in c_vsetup(0x10000): st_c.append(Op(x, lo, 16 * 110))
        for r in (0, 2): st_c.append(Op(clr(vLs + r), 16 * 119))
    rep = []
    schedule(E, mains, [st_w, st_m, st_o, st_c] + eps + qs, report=rep, prio={1: 0, 0: 1})
    E.notes.append('AB(ffn=%d) overflow cycles %d' % (ffn, rep[0]))
    if ffn:
        c_clear_small(E, False)
        E(WaitL({('a', r) for r in range(96)}))
        E('s_add_u32 %s, %s, %d' % (S(sSRC), S(sSRC), 65536))
        stamp(E, 17)
        c_check_exit(E, 0)
        return
    t0 = vT + 2
    E(I(POLL1, 'poll'))
    E('v_lshrrev_b32 v%d, 4, v0' % t0)
    E('v_lshlrev_b32 v%d, 4, v%d' % (t0, t0))
    for ks in range(16):
        E('buffer_load_dwordx4 %s, v%d, %s, 0 offen offset:%d' % (V(vO + 64 + 4 * ks, 4), t0, S(sGW, 4), ks * 64))
    E(c_vsetup(0))
    E(WaitV())
    E(spin(E, 'L_kv2', POLL1, vFL + 3, TEST1))
    E('s_barrier')
    for par in range(2):
        for g in c_dma(par, 8, 'kv%d' % par, 32768 * par): E(g)
    E('s_add_u32 %s, %s, %d' % (S(sSRC), S(sSRC), 65536))
    for f in range(16): E('ds_write_b128 v%d, %s offset:%d' % (vXA, V(vQ + 4 * f, 4), 1024 * f))
    for tt in range(4):
        for ks in range(16):
            acc = V(vSP + 4 * tt, 4)
            E('%s %s, %s, %s, %s' % (MF, acc, V(vO + 64 + 4 * ks, 4), Ac(16 * ks + 4 * tt, 4), acc if ks else '0'))
    E('s_lshl_b32 %s, %s, 8' % (S(sT0), S(sTB)))
    E('s_add_u32 %s, %s, %d' % (S(sT0), S(sT0), WS_G))
    E('v_and_b32 v%d, 15, v0' % t0)
    E('v_lshlrev_b32 v%d, 2, v%d' % (t0, t0))
    for op in ('v_mul_f32 v%%d, %s, v%%d' % S(sNL), 'v_exp_f32 v%d, v%d', 'v_add_f32 v%d, 1.0, v%d', 'v_rcp_f32 v%d, v%d'):
        for tt in range(4): E(op % (vSP + 4 * tt, vSP + 4 * tt))
    E('s_nop 0')
    for tt in range(4):
        E('buffer_store_dword v%d, v%d, %s, %s offen offset:%d %s' % (vSP + 4 * tt, t0, S(sWS, 4), S(sT0), tt * 64, SC), 'st')
    c_clear(E)
    c_clear_small(E)
    E(WaitLV(None, {'kv0'}))
    E('s_barrier')
    E(c_reads(0))
    E(WaitL())
    stamp(E, 17)


def aK(par, kt, p): return 128 * par + 4 * (4 * kt + p)
def aV(par, c, ks): return 128 * par + 64 + 4 * (2 * c + ks)
def c_entry_state(par):
    return ([{('a', r) for r in range(128 * par + 64 + 4 * f, 128 * par + 68 + 4 * f)} for f in range(8, 16)], [('kv', set())] * 16)
def c_check_exit(E, par):
    ok = {('a', r) for r in range(128 * par + 96, 128 * par + 128)}
    assert all(d <= ok for d in E.lq), E.lq
    assert all(not d for _, d in E.vq)

def c_reads(par):
    return ['ds_read_b128 %s, v%d offset:%d' % (Ac(128 * par + 4 * f, 4), vRD + par, 1024 * f) for f in range(32)]

def c_dma(par, n, tag='kv', add=0):
    out = []
    base = sD8 if n == 8 else sD16
    for k in range(n):
        g = []
        if k % 4 == 0:
            g = ['s_add_u32 m0, %s, %d' % (S(base), 65536 * par + 1024 * k), 's_add_u32 %s, %s, %d' % (S(sSO), S(sSRC), 1024 * k + add)]
        out.append(g + [I('buffer_load_dwordx4 v%d, %s, %s offen offset:%d %s lds' % (vL16, S(sNUL, 4), S(sSO), 1024 * (k % 4), SC), tag)])
    return out

def c_softmax(q, pp, kts, zero_rest=0):
    gaps = {}
    def put(g, x): gaps.setdefault(g, []).append(x)
    for k in range(8):
        kt = k >> 1
        a = vS + 2 * k
        d = vP + 8 * pp + k
        if kt < kts:
            for j in range(2):
                put(8 + 4 * k + 2 * j, 'v_exp_f32 v%d, v%d' % (a + j, a + j))
                put(13 + 4 * k, 'v_add_f32 v%d, v%d, v%d' % (vLs + q, vLs + q, a + j))
            put(11 + 4 * k, 'v_cvt_pk_bf16_f32 v%d, v%d, v%d' % (d, a, a + 1))
        elif kt < kts + zero_rest:
            put(11 + 4 * k, 'v_mov_b32 v%d, 0' % d)
    return gaps

def c_pv(q, par, pp, nks=2):
    out = []
    for c in range(8):
        for ks in range(2):
            o = V(vO + 32 * q + 4 * c, 4)
            out.append('%s %s, %s, %s, %s' % (MF, o, Ac(aV(par, c, ks), 4), V(vP + 8 * pp + 4 * ks, 4), o) if ks < nks else None)
    return out

def it_stamp():
    if not STAMPS: return []
    return ['s_add_u32 m0, %s, 18' % S(sIT)] + stamp_ops('m0')

def c_body(E, par, ndma, diag, reads=True, tail=()):
    E.set_state(c_entry_state(par))
    m = [None] * 128
    first = [[] for _ in range(128)]
    valu = [[] for _ in range(128)]
    for q in range(4):
        kts = q + 1 if diag else 4
        for kt in range(kts):
            for p in range(4):
                d = V(vS + 4 * kt, 4)
                c = d if p else (V(vMK, 4) if (diag and kt == q) else '0')
                m[32 * q + 4 * kt + p] = '%s %s, %s, %s, %s' % (MF, d, Ac(aK(par, kt, p), 4), V(vQ + 16 * p + 4 * q, 4), c)
        if q == 0: pv = c_pv(3, par ^ 1, 1)
        else: pv = c_pv(q - 1, par, (q - 1) & 1, (1 if q - 1 < 2 else 2) if diag else 2)
        m[32 * q + 16:32 * q + 32] = pv
        for g, ops in c_softmax(q, q & 1, kts, kts & 1).items():
            if 32 * q + g < 128: valu[32 * q + g] += ops
    for g, ops in c_softmax(3, 1, 4).items():
        if g >= 32: valu[g - 32] = ops + valu[g - 32]
    first[2] += [WaitLV(None, None), 's_barrier'] + it_stamp()
    if reads:
        rd = c_reads(par ^ 1)
        pos = [3 + 4 * k for k in range(31)]
        pos.insert(24, 97)
        for g, r in zip(pos, rd): first[g].append(r)
        first[120].append(WaitL({('a', r) for r in range(128 * (par ^ 1), 128 * (par ^ 1) + 96)}))
    for k, g in enumerate(c_dma(par, ndma) if ndma else []):
        at = 5 + 4 * k
        if len(g) > 1:
            first[at - 1].append(g[0]); first[at - 3 if k else 1].append(g[1])
        first[at].append(g[-1])
    sl = [100 + 2 * k for k in range(10)]
    tail = ['s_add_u32 %s, %s, 1' % (S(sIT), S(sIT))] + list(tail)
    if ndma: tail = ['s_add_u32 %s, %s, %d' % (S(sSRC), S(sSRC), 4096 * ndma)] + tail
    for g, x in zip(sl, tail): first[g].append(x)
    assert len(tail) <= len(sl)
    for g in range(128):
        if m[g]: E(m[g])
        E(first[g]); E(valu[g])
    c_check_exit(E, par ^ 1)

def c_tail(E, par):
    sm = c_softmax(3, 1, 4)
    ops = [x for g in sorted(sm) if g >= 32 for x in sm[g]]
    E([x for x in ops if 'exp' in x])
    E([x for x in ops if 'add' in x][:2])
    E([x for x in ops if 'cvt' in x])
    E([x for x in ops if 'add' in x][2:])
    E(c_pv(3, par, 1))

def lane_reduce(E, regs, op):
    t = vT
    for sw in ('v_permlane32_swap_b32', 'v_permlane16_swap_b32'):
        for k, r in enumerate(regs): E('v_mov_b32 v%d, v%d' % (t + k, r))
        for k, r in enumerate(regs): E('%s v%d, v%d' % (sw, t + k, r))
        for k, r in enumerate(regs): E('%s v%d, v%d, v%d' % (op, r, r, t + k))

def c_rowsum(E, qs, check=True):
    qs = list(qs)
    lane_reduce(E, [vLs + q for q in qs], 'v_add_f32')
    if check:
        E('s_mov_b32 %s, %s' % (S(sT0), L_LO if not OPT['forcebad'] else f32(1e30)))
        E('v_mov_b32 v%d, %s' % (vT + 1, L_HI))
        for k, q in enumerate(qs):
            E('v_med3_f32 v%d, v%d, %s, v%d' % (vT, vLs + q, S(sT0), vT + 1))
            E('v_cmp_neq_f32 %s, v%d, v%d' % ('vcc' if k & 1 else S(sE0, 2), vT, vLs + q))
            if k & 1:
                E('v_rcp_f32 v%d, v%d' % (vLs + qs[k - 1], vLs + qs[k - 1]))
                E('v_rcp_f32 v%d, v%d' % (vLs + q, vLs + q))
                E('s_or_b64 %s, %s, %s' % (S(sBAD, 2), S(sBAD, 2), S(sE0, 2)))
                E('s_or_b64 %s, %s, vcc' % (S(sBAD, 2), S(sBAD, 2)))
    else:
        for q in qs: E('v_rcp_f32 v%d, v%d' % (vLs + q, vLs + q))

def c_out(E, q):
    for p in range(4):
        a = vO + 32 * q + 8 * p
        E('s_add_u32 %s, %s, %d' % (S(sT0), S(sCTX), 4096 * p))
        for r in range(8): E('v_mul_f32 v%d, v%d, v%d' % (a + r, vLs + q, a + r))
        for r in range(4): E('v_cvt_pk_bf16_f32 v%d, v%d, v%d' % (a + r, a + 2 * r, a + 2 * r + 1))
        E('buffer_store_dwordx4 %s, v%d, %s, %s offen offset:%d %s' % (V(a, 4), vL16, S(sWS, 4), S(sT0), 1024 * q, SC), 'st')

def c_ctx_base(tb):
    return ['s_lshl_b32 %s, %s, 5' % (S(sCTX), S(tb)), 's_add_u32 %s, %s, %s' % (S(sCTX), S(sCTX), S(sH)),
            's_lshl_b32 %s, %s, 14' % (S(sCTX), S(sCTX)), 's_add_u32 %s, %s, %d' % (S(sCTX), S(sCTX), WS_CTX)]

def c_clear(E, qs=range(4)):
    for q in qs:
        for r in range(0, 32, 2): E('v_mov_b64 %s, 0' % V(vO + 32 * q + r, 2))
def c_clear_small(E, sums=True):
    if sums:
        for r in range(0, 4, 2): E('v_mov_b64 %s, 0' % V(vLs + r, 2))
    E('v_mov_b64 %s, 0' % V(vS + 10, 2))
    for r in range(12, 16): E('v_mov_b32 v%d, %s' % (vS + r, NEG))
    for r in range(0, 6, 2): E('v_mov_b64 %s, 0' % V(vP + 8 + r, 2))

def c_idle(E, par, signal, tail=()):
    E.set_state(c_entry_state(par))
    c_tail(E, par ^ 1)
    c_rowsum(E, range(4))
    c_out(E, 0)
    E(WaitLV(None, {'kv'}))
    E('s_barrier')
    E(it_stamp())
    if signal:
        E('buffer_atomic_add v%d, v%d, %s, 0 offen sc1' % (vFL + 2, vFL + 1, S(sDBG, 4)), 'sig')
    for g in c_dma(par, 16): E(g)
    E('s_add_u32 %s, %s, %d' % (S(sSRC), S(sSRC), 65536))
    for r in range(0, 4, 2): E('v_mov_b64 %s, %s' % (V(vS + r, 2), V(vQ + r, 2)))
    for f in range(16):
        E('ds_read_b128 %s, v%d offset:%d' % (V(vQ + 4 * f, 4), vQA, 1024 * f))
        E('ds_write_b128 v%d, %s offset:%d' % (vQA, V(vQ + 4 * f + 4, 4) if f < 15 else V(vS, 4), 1024 * f))
    rd = c_reads(par ^ 1)
    for q in range(1, 4):
        E(rd[8 * (q - 1):8 * q])
        c_out(E, q)
    E(rd[24:])
    c_clear(E)
    c_clear_small(E)
    E('s_sub_u32 %s, 33, %s' % (S(sT0), S(sTI)))
    E('s_sub_u32 %s, %s, %s' % (S(sT0), S(sT0), S(sW)))
    E(c_ctx_base(sT0))
    E('s_add_u32 %s, %s, 1' % (S(sIT), S(sIT)))
    E(tail)
    E(WaitL())
    c_check_exit(E, par ^ 1)

POLL2 = 'buffer_load_dword v%d, v%d, %s, 0 offen sc1' % (vFL + 3, vFL + 1, S(sDBG, 4))
TEST2 = ['v_readfirstlane_b32 %s, v%d' % (S(sT2), vFL + 3), 's_cmp_ge_u32 %s, 32' % S(sT2)]

def c_main(E):
    L = lambda x: 'L_c_' + x
    E('s_cmp_eq_u32 %s, 0' % S(sI))
    E('s_cbranch_scc1 %s' % L('mid'))
    E(L('e8') + ':')
    c_body(E, 0, 8, False)
    c_body(E, 1, 8, False, tail=['s_cmp_lt_u32 %s, %s' % (S(sIT), S(sTI))])
    E('s_cbranch_scc1 %s' % L('e8'))
    E(L('mid') + ':')
    E('s_sub_u32 %s, 15, %s' % (S(sT0), S(sI)))
    E('s_lshl_b32 %s, %s, 16' % (S(sT0), S(sT0)))
    E('s_add_u32 %s, %s, %s' % (S(sT0), S(sT0), S(sKVH)))
    E('s_add_u32 %s, %s, %s' % (S(sSRC), S(sT0), S(sD16)))
    E('s_cmp_eq_u32 %s, 2' % S(sW))
    E('s_cbranch_scc1 %s' % L('de'))
    E('s_branch %s' % L('e16'))
    E('.p2align 6')
    E(L('o16') + ':')
    c_body(E, 1, 16, False, tail=['s_cmp_eq_u32 %s, %s' % (S(sIT), S(sTD))])
    E('s_cbranch_scc1 %s' % L('de'))
    E(L('e16') + ':')
    chk = ['s_cmp_lg_u32 %s, %s' % (S(sIT), S(sNX))]
    c_body(E, 0, 16, False, tail=chk)
    E('s_cbranch_scc1 %s' % L('o16'))
    E(L('disp') + ':')
    E('s_cmp_eq_u32 %s, 17' % S(sIT))
    E('s_cbranch_scc1 %s' % L('fin'))
    E('s_add_u32 %s, %s, 1' % (S(sT0), S(sTI)))
    E('s_cmp_lg_u32 %s, %s' % (S(sIT), S(sT0)))
    E('s_cbranch_scc1 %s' % L('o0'))
    E('s_and_b32 %s, %s, 1' % (S(sT0), S(sW)))
    E('s_lshl_b32 %s, %s, 15' % (S(sT0), S(sT0)))
    E('v_add_u32 v%d, %s, v%d' % (vRD, S(sT0), vL16))
    E('v_add_u32 v%d, 0x10000, v%d' % (vRD + 1, vRD))
    E('s_add_u32 %s, %s, 1' % (S(sT0), S(sI)))
    E('s_lshl_b32 %s, %s, 16' % (S(sT0), S(sT0)))
    E('s_add_u32 %s, %s, %s' % (S(sT0), S(sT0), S(sKVH)))
    E('s_add_u32 %s, %s, %s' % (S(sSRC), S(sT0), S(sD16)))
    E('s_cmp_eq_u32 %s, 7' % S(sI))
    E('s_cselect_b32 %s, 17, 15' % S(sNX))
    E('s_cselect_b32 %s, 0, %s' % (S(sNUL + 2), S(sNUL + 2)))
    E('s_cmp_lt_u32 %s, 2' % S(sW))
    E('s_cbranch_scc1 %s' % L('o16'))
    E('s_cmp_eq_u32 %s, 3' % S(sW))
    E('s_cbranch_scc1 %s' % L('do'))
    c_idle(E, 1, True)
    E('s_branch %s' % L('e16'))
    E(L('de') + ':')
    c_body(E, 0, 16, True, tail=chk)
    E('s_cbranch_scc1 %s' % L('o16'))
    E('s_branch %s' % L('disp'))
    E(L('do') + ':')
    c_body(E, 1, 16, True)
    c_idle(E, 0, False, tail=chk)
    E('s_cbranch_scc1 %s' % L('o16'))
    E('s_branch %s' % L('disp'))
    E('.p2align 6')
    E(L('o0') + ':')
    c_body(E, 1, 0, False)
    c_body(E, 0, 0, False, reads=False)
    E(L('fin') + ':')
    E.set_state(c_entry_state(1))
    stamp(E, 35)
    E(I(POLL2, 'poll'))
    c_tail(E, 0)
    E('s_sub_u32 %s, 3, %s' % (S(sT0), S(sW)))
    E('s_lshl_b32 %s, %s, 15' % (S(sT0), S(sT0)))
    E('v_add_u32 v%d, %s, v%d' % (vXA, S(sT0), vL16))
    E('s_lshl_b32 %s, %s, 15' % (S(sT0), S(sW)))
    E('v_add_u32 v%d, %s, v%d' % (vRD, S(sT0), vL16))
    E(WaitLV(None, {'kv'}))
    E('s_barrier')
    st = E.state()
    E('s_cmp_ge_u32 %s, 2' % S(sW))
    E('s_cbranch_scc1 %s' % L('mb'))
    for keep, lab in (((0, 1), None), ((2, 3), L('mb'))):
        if lab: E(lab + ':')
        E.set_state(st)
        send = (2, 3) if keep == (0, 1) else (0, 1)
        for f in range(16): E('ds_write_b128 v%d, %s offset:%d' % (vXA, V(vO + 32 * send[0] + 4 * f, 4), 1024 * f))
        E('ds_write_b64 v%d, %s offset:16384' % (vXA, V(vLs + send[0], 2)))
        E(WaitL())
        E('s_barrier')
        E('ds_read_b64 %s, v%d offset:16384' % (V(vLs + send[0], 2), vRD))
        for f in range(16): E('ds_read_b128 %s, v%d offset:%d' % (V(vO + 32 * send[0] + 4 * f, 4), vRD, 1024 * f))
        for k in range(2): E('v_add_f32 v%d, v%d, v%d' % (vLs + keep[k], vLs + keep[k], vLs + send[k]))
        c_rowsum(E, keep)
        E(WaitL())
        for k, q in enumerate(keep):
            for r in range(0, 32, 2):
                E('v_pk_add_f32 %s, %s, %s' % (V(vO + 32 * q + r, 2), V(vO + 32 * q + r, 2), V(vO + 32 * send[k] + r, 2)))
            c_out(E, q)
        if not lab: E('s_branch %s' % L('done'))
    E(L('done') + ':')
    stamp(E, 36)


def c_guarded(E):
    vM, vNG, vAL = 2, 6, 16
    E('L_guard:')
    E('s_waitcnt vmcnt(0) lgkmcnt(0)')
    E('s_barrier')
    E.set_state(([], []))
    E('s_cmp_lt_u32 %s, 2' % S(sW))
    E('s_cbranch_scc1 L_guard_q')
    E('s_sub_u32 %s, 3, %s' % (S(sT0), S(sW)))
    E('s_lshl_b32 %s, %s, 14' % (S(sT0), S(sT0)))
    E('s_add_u32 %s, %s, 0x20000' % (S(sT0), S(sT0)))
    E('v_add_u32 v%d, %s, v%d' % (vT, S(sT0), vL16))
    for f in range(16): E('ds_read_b128 %s, v%d offset:%d' % (V(vQ + 4 * ((f + 1) % 16), 4), vT, 1024 * f))
    E(WaitL())
    E('L_guard_q:')
    c_clear(E)
    for r in range(4):
        E('v_mov_b32 v%d, 0' % (vLs + r)); E('v_mov_b32 v%d, 0' % (vMK + r)); E('v_mov_b32 v%d, 0' % (vNG + r))
        E('v_mov_b32 v%d, %s' % (vM + r, f32(-3e38)))
    E(c_ctx_base(sTB))
    E('s_mov_b32 %s, 0' % S(sIT))
    E('s_mov_b32 %s, %s' % (S(sSRC), S(sKVH)))
    E('L_guard_loop:')
    for f in range(32):
        if f % 4 == 0: E('s_add_u32 %s, %s, %d' % (S(sSO), S(sSRC), 1024 * f))
        E('buffer_load_dwordx4 %s, v%d, %s, %s offen offset:%d %s' % (Ac(4 * f, 4), vL16, S(sWS, 4), S(sSO), 1024 * (f % 4), SC))
    E('s_cmp_lg_u32 %s, %s' % (S(sIT), S(sTB)))
    E('s_cbranch_scc1 L_guard_full')
    E(mask_ops())
    for r in range(4): E('v_mov_b32 v%d, %s' % (vNG + r, NEG))
    E('L_guard_full:')
    E(WaitV())
    for q in range(4):
        for kt in range(4):
            for p in range(4):
                d = V(vS + 4 * kt, 4)
                c = d if p else ('0' if kt < q else V(vMK if kt == q else vNG, 4))
                E('%s %s, %s, %s, %s' % (MF, d, Ac(aK(0, kt, p), 4), V(vQ + 16 * p + 4 * q, 4), c))
        E('v_max3_f32 v%d, v%d, v%d, v%d' % (vAL, vS, vS + 1, vM + q))
        for r in range(2, 16, 2): E('v_max3_f32 v%d, v%d, v%d, v%d' % (vAL, vS + r, vS + r + 1, vAL))
        lane_reduce(E, [vAL], 'v_max_f32')
        E('v_sub_f32 v%d, v%d, v%d' % (vAL + 1, vM + q, vAL))
        E('v_exp_f32 v%d, v%d' % (vAL + 1, vAL + 1))
        E('v_mov_b32 v%d, v%d' % (vM + q, vAL))
        for r in range(16): E('v_sub_f32 v%d, v%d, v%d' % (vS + r, vS + r, vAL))
        for r in range(16): E('v_exp_f32 v%d, v%d' % (vS + r, vS + r))
        E('v_mul_f32 v%d, v%d, v%d' % (vLs + q, vLs + q, vAL + 1))
        for r in range(32): E('v_mul_f32 v%d, v%d, v%d' % (vO + 32 * q + r, vO + 32 * q + r, vAL + 1))
        for r in range(16): E('v_add_f32 v%d, v%d, v%d' % (vLs + q, vLs + q, vS + r))
        for r in range(8): E('v_cvt_pk_bf16_f32 v%d, v%d, v%d' % (vP + r, vS + 2 * r, vS + 2 * r + 1))
        E(c_pv(q, 0, 0))
    E('s_add_u32 %s, %s, 32768' % (S(sSRC), S(sSRC)))
    E('s_add_u32 %s, %s, 1' % (S(sIT), S(sIT)))
    E('s_cmp_le_u32 %s, %s' % (S(sIT), S(sTB)))
    E('s_cbranch_scc1 L_guard_loop')
    c_rowsum(E, range(4), False)
    for q in range(4): c_out(E, q)
    E('s_mov_b64 %s, 0' % S(sBAD, 2))
    E(WaitV())
    E('s_branch L_d_start')


vDV = 2
vDR = 6
vG = 12
vG1 = 20
vDX, vDY = 10, 11
vDZ, vDP = 16, 17
sDT, sDC = 70, 71
sDA, sDB, sDM = 61, 62, 63
sDA2, sDB2 = 72, 73

def d_setup(E):
    t0, t1, t2 = vT, vT + 1, vT + 2
    E('s_sub_u32 %s, 15, %s' % (S(sT0), S(sI)))
    E('s_bitcmp1_b32 s2, 0')
    E('s_cselect_b32 %s, %s, %s' % (S(sT0), S(sT0), S(sI)))
    E('s_lshl_b32 %s, %s, 1' % (S(sT0), S(sT0)))
    E('s_bfe_u32 %s, s2, 0x10002' % S(sT1))
    E('s_add_u32 %s, %s, %s' % (S(sDT), S(sT0), S(sT1)))
    E('s_and_b32 %s, %s, 3' % (S(sT0), S(sH)))
    E('s_lshl_b32 %s, %s, 1' % (S(sT0), S(sT0)))
    E('s_bfe_u32 %s, s2, 0x10001' % S(sT1))
    E('s_add_u32 %s, %s, %s' % (S(sDC), S(sT0), S(sT1)))
    E('s_lshl_b32 %s, %s, 15' % (S(sDM), S(sW)))
    E('s_mul_i32 %s, %s, 56' % (S(sDA), S(sDT)))
    E('s_mul_i32 %s, %s, 14' % (S(sT0), S(sW)))
    E('s_add_u32 %s, %s, %s' % (S(sDA), S(sDA), S(sT0)))
    E('s_lshl_b32 %s, %s, 12' % (S(sDA), S(sDA)))
    E('s_add_u32 %s, %s, %d' % (S(sDA), S(sDA), WS_H))
    E('s_lshl_b32 %s, %s, 15' % (S(sDB), S(sT0)))
    E('s_lshl_b32 %s, %s, 7' % (S(sT1), S(sDC)))
    E('s_add_u32 %s, %s, %s' % (S(sDB), S(sDB), S(sT1)))
    E('s_lshl_b32 %s, %s, 2' % (S(sDA2), S(sDT)))
    E('s_add_u32 %s, %s, %s' % (S(sDA2), S(sDA2), S(sW)))
    E('s_lshl_b32 %s, %s, 17' % (S(sDA2), S(sDA2)))
    E('s_add_u32 %s, %s, %d' % (S(sDA2), S(sDA2), WS_CTX))
    E('s_lshl_b32 %s, %s, 20' % (S(sDB2), S(sW)))
    E('s_add_u32 %s, %s, %s' % (S(sDB2), S(sDB2), S(sT1)))
    E('v_lshrrev_b32 v%d, 3, v0' % t0)
    E('v_bfe_u32 v%d, v0, 1, 2' % t1)
    E('v_lshrrev_b32 v%d, 4, v0' % t2)
    E('v_xor_b32 v%d, v%d, v%d' % (t1, t1, t2))
    E('v_lshlrev_b32 v%d, 5, v%d' % (t1, t1))
    E('v_lshl_add_u32 v%d, v%d, 10, v%d' % (t0, t0, t1))
    E('v_and_b32 v%d, 1, v0' % t1)
    E('v_lshl_add_u32 v%d, v%d, 4, v%d' % (vDV, t1, t0))
    for q in range(1, 4): E('v_add_u32 v%d, %d, v%d' % (vDV + q, 7168 * q, vDV))
    E('v_lshrrev_b32 v%d, 2, v0' % t0)
    E('v_lshlrev_b32 v%d, 7, v%d' % (t0, t0))
    E('v_and_b32 v%d, 3, v0' % t1)
    E('v_lshl_add_u32 v%d, v%d, 3, v%d' % (t0, t1, t0))
    E('v_bfe_u32 v%d, v0, 3, 2' % t2)
    E('v_lshl_add_u32 v%d, v%d, 5, v%d' % (t0, t2, t0))
    E('v_add_u32 v%d, %s, v%d' % (vDR, S(sDM), t0))
    for c in range(1, 4): E('v_xor_b32 v%d, %d, v%d' % (vDR + c, 32 * c, vDR))
    E('s_lshl_b32 %s, %s, 2' % (S(sT0), S(sW)))
    E('s_add_u32 %s, %s, 0x7000' % (S(sT0), S(sT0)))
    E('v_lshl_add_u32 v%d, v%d, 15, %s' % (t0, t1, S(sT0)))
    E('s_or_b32 %s, %s, %s' % (S(sT0), S(sBAD), S(sBAD + 1)))
    E('v_mov_b32 v%d, %s' % (t1, S(sT0)))
    E('ds_write_b32 v%d, v%d' % (t0, t1))


def d_main(E):
    NF, NC = 14, 32
    N = NF + NC
    D = 7
    accA, accB = vO, vO + 64
    def loads(n):
        f = n < NF
        sa, sb = (sDA, sDB) if f else (sDA2, sDB2)
        srd = sWD if f else sWO
        slot = n % 8
        g = ['s_add_u32 m0, %s, %d' % (S(sDM), 4096 * slot)]
        for tt in range(4):
            g.append(I('buffer_load_dwordx4 %s, v%d, %s, %s offen offset:%d %s' % (Ac(16 * slot + 4 * tt, 4), vL16, S(sWS, 4), S(sa), 1024 * tt, SC), ('A', n)))
        for q in range(4):
            g.append(I('buffer_load_dwordx4 v%d, %s, %s offen offset:%d lds' % (vDV + q, S(srd, 4), S(sb), 1024 * q), ('B', n)))
        g += ['s_add_u32 %s, %s, 4096' % (S(sa), S(sa)), 's_add_u32 %s, %s, 32768' % (S(sb), S(sb))]
        return g
    def reads(n):
        return ['ds_read_b64_tr_b16 %s, v%d offset:%d' % (V(vSP + 16 * (n & 1) + 4 * c + 2 * jh, 2), vDR + c, 4096 * (n % 8) + 2048 * jh)
                for c in range(4) for jh in range(2)]
    E(WaitV({'poll'}))
    E(spin(E, 'L_slot', POLL2, vFL + 3, TEST2))
    E('L_d_start:')
    E.set_state(([], [('st', set())] * 16))
    d_setup(E)
    for n in range(D - 1): E(loads(n))
    E('v_mov_b32 v%d, %s' % (vT, S(sDM)))
    E(WaitLV(None, {'st'}))
    E('s_barrier')
    E('ds_read_b128 %s, v%d offset:%d' % (V(vT, 4), vT, 0x7000))
    E('s_lshl_b32 %s, %s, 5' % (S(sT1), S(sI)))
    E('s_add_u32 %s, %s, %s' % (S(sT0), S(sT1), S(sH)))
    E('s_lshl_b32 %s, %s, 10' % (S(sT0), S(sT0)))
    E('s_add_u32 %s, %s, %d' % (S(sT0), S(sT0), WS_F))
    E('s_cmp_lg_u32 %s, 0' % S(sW))
    E('s_cselect_b32 %s, 0x%x, %s' % (S(sT0), WS_SIZE, S(sT0)))
    E('s_lshl_b32 %s, %s, 3' % (S(sT3), S(sW)))
    E('s_add_u32 %s, %s, %s' % (S(sT1), S(sT1), S(sT3)))
    E('s_lshl_b32 %s, %s, 10' % (S(sT1), S(sT1)))
    E('s_add_u32 %s, %s, %d' % (S(sT1), S(sT1), WS_F))
    E('v_and_b32 v%d, 7, v0' % vDP)
    E('v_lshl_add_u32 v%d, v%d, 10, %s' % (vDP, vDP, S(sT1)))
    E('v_mov_b32 v%d, 0' % vDZ)
    E(WaitL())
    E('v_or3_b32 v%d, v%d, v%d, v%d' % (vT, vT, vT + 1, vT + 2))
    E('v_or_b32 v%d, v%d, v%d' % (vT, vT, vT + 3))
    E('v_readfirstlane_b32 %s, v%d' % (S(sT2), vT))
    E('s_cmp_lg_u32 %s, 0' % S(sT2))
    E('s_cbranch_scc1 L_guard')
    E('buffer_store_dword v%d, v%d, %s, %s offen %s' % (vFL + 2, vDZ, S(sWS, 4), S(sT0), SC), 'sig')
    stamp(E, 37)
    E('s_lshl_b32 %s, %s, 8' % (S(sT0), S(sDT)))
    E('s_add_u32 %s, %s, %d' % (S(sT0), S(sT0), WS_G))
    E('v_and_b32 v%d, 15, v0' % vDX)
    E('v_lshlrev_b32 v%d, 2, v%d' % (vDY, vDX))
    for tt in range(4): E('buffer_load_dword v%d, v%d, %s, %s offen offset:%d %s' % (vG + tt, vDY, S(sWS, 4), S(sT0), 64 * tt, SC), 'g')
    E(loads(D - 1))
    E(WaitV({('B', 0)}))
    E(reads(0))
    E(WaitL())
    POLL3 = 'buffer_load_dword v%d, v%d, %s, 0 offen sc1' % (vFL + 3, vDP, S(sWS, 4))
    TEST3 = ['v_cmp_ne_u32 vcc, 1, v%d' % (vFL + 3), 's_cmp_eq_u64 vcc, 0']
    mains = []
    for n in range(N):
        acc = accB if n < NF else accA
        for c in range(4):
            for tt in range(4):
                d = V(acc + 16 * c + 4 * tt, 4)
                mains.append('%s %s, %s, %s, %s' % (MF, d, V(vSP + 16 * (n & 1) + 4 * c, 4), Ac(16 * (n % 8) + 4 * tt, 4), '0' if n in (0, NF) else d))
    st_r = []; st_l = []; st_v = []
    PL = OPT.get('pl', 3)
    for n in range(N):
        if n + D == NF - PL: st_l.append(Op(I(POLL3, 'poll'), 16 * n, 16 * n))
        if n + D == NF: st_l.append(Op([WaitV({'poll'})] + spin(E, 'L_ctx', POLL3, vFL + 3, TEST3) + stamp_ops(38), 16 * n, 16 * n))
        if n + D < N:
            for k, x in enumerate(loads(n + D)): st_l.append(Op(x, 16 * n, min(16 * n + k, 16 * n + 9)))
        if n + 1 < N:
            st_r.append(Op(WaitV({('B', n + 1)}), 16 * n + 9, 16 * n + 9))
            for k, x in enumerate(reads(n + 1)): st_r.append(Op(x, 16 * n + 9, 16 * n + 9 + k // 2))
            st_r.append(Op(WaitL(), 16 * n + 15, 16 * n + 15))
    for tt in range(4): st_v.append(Op('v_sub_f32 v%d, 1.0, v%d' % (vG1 + tt, vG + tt), 16 * NF + 8))
    for c in range(4):
        for tt in range(4):
            for r in range(4):
                a = accB + 16 * c + 4 * tt + r
                st_v.append(Op('v_mul_f32 v%d, v%d, v%d' % (a, vG1 + tt, a), 16 * NF + 8))
    schedule(E, mains, [st_l, st_r, st_v])
    stamp(E, 39)
    E('s_lshl_b32 %s, %s, 12' % (S(sT0), S(sW)))
    E('v_add_u32 v%d, %s, v%d' % (vDY, S(sT0), vL16))
    E('v_lshrrev_b32 v%d, 4, v0' % vDZ)
    E('v_lshlrev_b32 v%d, 10, v%d' % (vT, vDZ))
    E('v_lshl_add_u32 v%d, v%d, 4, v%d' % (vT, vDX, vT))
    E('s_lshl_b32 %s, %s, 14' % (S(sT0), S(sW)))
    E('v_add_u32 v%d, %s, v%d' % (vT, S(sT0), vT))
    E('s_barrier')
    for c in range(4):
        for tt in range(4):
            a = accA + 16 * c + 4 * tt
            for r in range(4): E('v_fma_f32 v%d, v%d, v%d, v%d' % (a + r, vG + tt, a + r, a + 64 + r))
            E('ds_write_b128 v%d, %s offset:%d' % (vDY, V(a, 4), 16384 * tt + 1024 * c))
    E('s_lshl_b32 %s, %s, 2' % (S(sT0), S(sDT)))
    E('s_add_u32 %s, %s, %s' % (S(sT0), S(sT0), S(sW)))
    E('s_lshl_b32 %s, %s, 14' % (S(sT0), S(sT0)))
    E('s_lshl_b32 %s, %s, 7' % (S(sT1), S(sDC)))
    E('s_add_u32 %s, %s, %s' % (S(sT0), S(sT0), S(sT1)))
    E('v_lshlrev_b32 v%d, 5, v%d' % (vDZ, vDZ))
    E('v_lshl_add_u32 v%d, v%d, 10, v%d' % (vDZ, vDX, vDZ))
    E(WaitL())
    E('s_barrier')
    for src in range(4):
        for j in range(4): E('ds_read_b128 %s, v%d offset:%d' % (V(vQ + 16 * src + 4 * j, 4), vT, 4096 * src + 256 * j))
    E(WaitL({('v', vQ + 31)}))
    for r in range(0, 16, 2): E('v_pk_add_f32 %s, %s, %s' % (V(vQ + r, 2), V(vQ + r, 2), V(vQ + 16 + r, 2)))
    E(WaitL())
    for r in range(0, 16, 2): E('v_pk_add_f32 %s, %s, %s' % (V(vQ + 32 + r, 2), V(vQ + 32 + r, 2), V(vQ + 48 + r, 2)))
    for r in range(0, 16, 2): E('v_pk_add_f32 %s, %s, %s' % (V(vQ + r, 2), V(vQ + r, 2), V(vQ + 32 + r, 2)))
    for r in range(8): E('v_cvt_pk_bf16_f32 v%d, v%d, v%d' % (vQ + r, vQ + 2 * r, vQ + 2 * r + 1))
    for k in range(2): E('buffer_store_dwordx4 %s, v%d, %s, %s offen offset:%d' % (V(vQ + 4 * k, 4), vDZ, S(sOUT, 4), S(sT0), 16 * k))


def kernel():
    E = Em(); E.notes = []; E.tailcode = []
    setup_first(E)
    ab_prologue(E)
    E('s_cmp_lg_u32 %s, 0' % S(sNOF))
    E('s_cbranch_scc1 L_ab_noffn')
    st = E.state()
    ab_stream(E, True)
    E('L_c_start:')
    c_main(E)
    d_main(E)
    if STAMPS:
        stamp(E, 40)
        E('s_waitcnt vmcnt(0)')
        stamp(E, 41)
        stamp_flush(E)
        if OPT.get('echo'):
            a, b, mult = [int(x) for x in OPT['echo'][1:].split('_')]
            cyc = OPT['echo'][0] == 'c'
            E('s_nop 4')
            E('v_readlane_b32 s65, v%d, %d' % (30 if cyc else 31, a))
            E('v_readlane_b32 s66, v%d, %d' % (30 if cyc else 31, b))
            E('v_readlane_b32 s67, v31, 41')
            E('s_nop 4')
            E('s_sub_u32 s65, s66, s65')
            E('s_mul_i32 s65, s65, %d' % mult)
            if cyc: E('s_lshr_b32 s65, s65, 4')
            E('s_min_u32 s65, s65, 100000')
            E('L_echo:')
            E('s_memrealtime s[86:87]')
            E('s_waitcnt lgkmcnt(0)')
            E('s_sub_u32 s86, s86, s67')
            E('s_cmp_lt_u32 s86, s65')
            E('s_cbranch_scc1 L_echo')
    E('s_endpgm')
    E.set_state(st)
    E('L_ab_noffn:')
    ab_stream(E, False)
    E('s_branch L_c_start')
    c_guarded(E)
    for t in E.tailcode:
        E.set_state(([], []))
        E(t)
    E('L_end:')
    E('s_endpgm')
    return E


def finish(E, small=True):
    txt = []
    hdr = open('cdna_kernels/%s.s.ref' % NAME).read().split('\n')
    for l in hdr:
        if not l.startswith(';'): break
        if '@launch' not in l: txt.append(l)
    txt.append('; @launch grid=(256,1,1) block=(256,1,1) lds=163840')
    txt.append('.amdgcn_target "amdgcn-amd-amdhsa--gfx950"')
    if small: txt.append(MACROS)
    txt.append('.text')
    ins, n = hazard_pass(E.out, verbose=VERBOSE)
    sys.stderr.write('%d instructions, %d nops inserted, %d auto waits; %s\n' % (len(ins), n, len(E.auto_waits), '; '.join(E.notes)))
    if VERBOSE:
        for w in E.auto_waits: sys.stderr.write('   auto wait before %s\n' % (w,))
    txt.append('.globl %s\n.p2align 8\n.type %s,@function\n%s:' % (KN, KN, KN))
    txt.append(render(ins, small))
    txt.append('.section .rodata,"a"')
    txt.append('.p2align 6\n.amdhsa_kernel %s\n  .amdhsa_next_free_vgpr 512\n  .amdhsa_next_free_sgpr 102\n'
               '  .amdhsa_accum_offset 256\n  .amdhsa_group_segment_fixed_size 0\n  .amdhsa_kernarg_size 112\n'
               '  .amdhsa_user_sgpr_count 2\n  .amdhsa_user_sgpr_kernarg_segment_ptr 1\n'
               '  .amdhsa_system_sgpr_workgroup_id_x 1\n  .amdhsa_float_denorm_mode_32 3\n.end_amdhsa_kernel' % KN)
    return '\n'.join(txt) + '\n'


VERBOSE = False
if __name__ == '__main__':
    VERBOSE = '-v' in sys.argv
    STAMPS = '-s' in sys.argv
    for a in sys.argv[2:]:
        if '=' in a:
            k, v = a.split('='); OPT[k] = v if (not v or v[0].isalpha()) else (float(v) if '.' in v else int(v))
    open(sys.argv[1], 'w').write(finish(kernel(), '-l' not in sys.argv))
```

```python
import sys, math, struct
from core import *

NAME = 'gated_mix__compressed_kv_cla__glu_gated_glu__prompt'
KN = NAME + '_kernel'
MF = 'v_mfma_f32_16x16x32_bf16'
MB = 1 << 20
SC = 'sc1'

WS_KV = 0
WS_CTX = 32 * MB
WS_H = 48 * MB
WS_G = 56 * MB
WS_F = 57 * MB
WS_P = 58 * MB
WS_T = 75 * MB
WS_SIZE = 76 * MB

sX, sC, sWQ, sWK, sWV, sWO, sWG, sWU, sWD, sGW, sOUT, sWS, sDBG = [4 + 4 * i for i in range(13)]
sH, sI, sW, sFC = 56, 57, 58, 59
sTB = 60
sNX, sD8, sD16, sCTX = 61, 62, 63, 64
sT0, sT1, sT2, sT3 = 65, 66, 67, 68
sSO = 69
sM0W, sM0A = 70, 71
sHC, sFB = 72, 73
sNEED = 74
sST = 75
sQS, sNL = 76, 77
sROWC, sROWX = 78, 79
sNOF = 80
sIT, sTD, sTI = 81, 82, 83
sSRC = 84
sKVH = 85
sNUL = 88
sE0 = 92
sBAD = 94
sB = [96, 97, 98, 99]
sHB = [0, 1]

vL16 = 1
vWR = 2
vAR = 6
vDW, vDF = 8, 9
vDA = 10
vPF = 12
vFL = 16
vWR2 = 20
vT = 24
vDUM = 28
vSP = 32
vQ = 64
vO = 128
vRD = 6
vQA = 10
vXA = 11
vMK = 12
vLs = 20
vS = vSP
vP = vSP + 16

OPT = dict(nt=0, pfl='c-2,k-1,x18.1,g23,u24,d88,o92', pf=1, wspan=4.0, xspan=2.5, kst=28, vst=16, forcebad=0)
def f32(x): return '0x%08x' % struct.unpack('<I', struct.pack('<f', x))[0]
NEG = f32(-1e30)
L_LO, L_HI = f32(2.0 ** -40), f32(2.0 ** 40)

STAMPS = False
def stamp_ops(k):
    if not STAMPS: return []
    return ['s_memtime s[100:101]', 's_memrealtime s[86:87]', 's_waitcnt lgkmcnt(0)',
            'v_writelane_b32 v30, s100, %s' % k, 'v_writelane_b32 v31, s86, %s' % k]
def stamp(E, k):
    E(stamp_ops(k))
def stamp_flush(E):
    if not STAMPS: return
    E('s_lshl_b32 s3, s2, 2')
    E('s_add_u32 s3, s3, %s' % S(sW))
    E('s_lshl_b32 s3, s3, 9')
    E('s_add_u32 s3, s3, %d' % WS_T)
    E('v_lshlrev_b32 v29, 3, v0')
    E('buffer_store_dwordx2 v[30:31], v29, %s, s3 offen' % S(sWS, 4), 'stamp')


def spin(E, name, load, reg, test):
    E.tailcode.append([name + '_spin:', 's_add_u32 s3, s3, 1', 's_cmp_gt_u32 s3, 0x200000', 's_cbranch_scc1 %s_back' % name,
                       load, 's_waitcnt vmcnt(0)'] + test + ['s_cbranch_scc0 %s_spin' % name, 's_branch %s_back' % name])
    return test + ['s_cbranch_scc0 %s_spin' % name, name + '_back:']


def setup_first(E):
    stamp(E, 42)
    E('s_cmp_ge_u32 s2, 256')
    E('s_cbranch_scc1 L_end')
    tab = [(sC, 8, 2 * MB), (sWK, 24, 4 * MB), (sWS, 104, WS_SIZE), (sX, 0, 2 * MB), (sWQ, 16, 4 * MB), (sWV, 32, 4 * MB), (sWO, 40, 4 * MB),
           (sWG, 56, 1835008), (sWU, 64, 1835008), (sWD, 72, 1835008), (sGW, 80, 1024), (sOUT, 88, 2 * MB), (sDBG, 96, 256)]
    for s, off, sz in tab: E('s_load_dwordx2 %s, s[0:1], %d' % (S(s, 2), off))
    E('v_lshrrev_b32 v1, 6, v0')
    E('v_and_b32 v0, 63, v0')
    E('v_readfirstlane_b32 %s, v1' % S(sW))
    E('v_lshlrev_b32 v%d, 4, v0' % vL16)
    stamp(E, 0)
    E('s_lshr_b32 %s, s2, 3' % S(sT1))
    if OPT['pf']:
        E('s_getpc_b64 %s' % S(sE0, 2))
        E('s_and_b32 %s, %s, 0xffffff00' % (S(sE0), S(sE0)))
        E('s_lshl_b32 %s, %s, 2' % (S(sT0), S(sT1)))
        E('s_add_u32 %s, %s, %s' % (S(sT0), S(sT0), S(sW)))
        E('s_min_u32 %s, %s, (L_end-%s)/1024-2' % (S(sT0), S(sT0), KN))
        E('s_lshl_b32 %s, %s, 10' % (S(sT0), S(sT0)))
        E('v_add_u32 v%d, %s, v%d' % (vT, S(sT0), vL16))
        E('global_load_dword v%d, v%d, %s' % (vDUM, vT, S(sE0, 2)), 'pfx')
    for s, off, sz in tab:
        E('s_mov_b32 %s, 0x%x' % (S(s + 2), sz))
        E('s_mov_b32 %s, 0x20000' % S(s + 3))
    E('s_and_b32 %s, s2, 7' % S(sT0))
    E('s_and_b32 %s, %s, 3' % (S(sT2), S(sT1)))
    E('s_lshr_b32 %s, %s, 2' % (S(sI), S(sT1)))
    E('s_lshl_b32 %s, %s, 2' % (S(sH), S(sT0)))
    E('s_add_u32 %s, %s, %s' % (S(sH), S(sH), S(sT2)))
    E('s_lshl_b32 %s, %s, 8' % (S(sHC), S(sH)))
    E('s_lshl_b32 %s, %s, 2' % (S(sT1), S(sI)))
    E('s_add_u32 %s, %s, %s' % (S(sT1), S(sT1), S(sW)))
    E('s_lshl_b32 %s, %s, 16' % (S(sROWC), S(sT1)))
    E('s_lshl_b32 %s, %s, 20' % (S(sKVH), S(sH)))
    E('s_lshl_b32 %s, %s, 15' % (S(sST), S(sT1)))
    E('s_add_u32 %s, %s, %s' % (S(sST), S(sST), S(sKVH)))
    E('s_lshr_b32 %s, %s, 1' % (S(sT1), S(sW)))
    E('s_lshl_b32 %s, %s, 3' % (S(sT1), S(sT1)))
    E('s_and_b32 %s, %s, 1' % (S(sT3), S(sW)))
    E('s_add_u32 %s, %s, %s' % (S(sT1), S(sT1), S(sT3)))
    E('s_lshl_b32 %s, %s, 10' % (S(sM0W), S(sT1)))
    E('s_lshl_b32 %s, %s, 14' % (S(sD16), S(sW)))
    E('s_add_u32 %s, %s, %d' % (S(sM0A), S(sD16), 96 * 1024))
    t0, t1, t2, t3 = vT, vT + 1, vT + 2, vT + 3
    E('s_lshl_b32 %s, s2, 2' % S(sSO))
    E('s_add_u32 %s, %s, %s' % (S(sSO), S(sSO), S(sW)))
    E('s_lshl_b32 %s, %s, 11' % (S(sSO), S(sSO)))
    E('v_lshl_add_u32 v%d, v0, 5, %s' % (vPF, S(sSO)))
    E('v_lshrrev_b32 v%d, 3, v0' % t0)
    E('v_and_b32 v%d, 7, v0' % t1)
    E('v_lshrrev_b32 v%d, 4, v0' % t2)
    E('v_xor_b32 v%d, v%d, v%d' % (t1, t1, t2))
    E('v_lshlrev_b32 v%d, 4, v%d' % (t1, t1))
    E('v_lshl_add_u32 v%d, v%d, 10, v%d' % (vDA, t0, t1))
    E('v_xor_b32 v%d, 64, v%d' % (vDA + 1, vDA))
    E('s_lshl_b32 %s, %s, 3' % (S(sT1), S(sT1)))
    E('v_add_u32 v%d, %s, v%d' % (t0, S(sT1), t0))
    E('v_bfe_u32 v%d, v0, 1, 2' % t1)
    E('v_bfe_u32 v%d, v0, 4, 1' % t2)
    E('s_lshl_b32 %s, %s, 1' % (S(sT3), S(sT3)))
    E('v_or_b32 v%d, %s, v%d' % (t2, S(sT3), t2))
    E('v_xor_b32 v%d, v%d, v%d' % (t1, t1, t2))
    E('v_and_b32 v%d, 1, v0' % t2)
    E('v_lshlrev_b32 v%d, 4, v%d' % (t2, t2))
    E('v_lshl_add_u32 v%d, v%d, 5, v%d' % (t1, t1, t2))
    E('v_lshl_add_u32 v%d, v%d, 13, v%d' % (vDW, t0, t1))
    E('v_mul_u32_u24 v%d, 3584, v%d' % (t0, t0))
    E('v_add_u32 v%d, v%d, v%d' % (vDF, t0, t1))
    E('s_waitcnt lgkmcnt(0)')


def setup_rest(E):
    t0, t1, t2, t3 = vT, vT + 1, vT + 2, vT + 3
    E('v_lshlrev_b32 v%d, 1, v%d' % (vPF + 1, vPF))
    E('s_lshr_b32 %s, s2, 3' % S(sT1))
    E('s_lshl_b32 %s, %s, 2' % (S(sT1), S(sT1)))
    E('s_add_u32 %s, %s, %s' % (S(sT1), S(sT1), S(sW)))
    E('s_lshl_b32 %s, %s, 15' % (S(sT1), S(sT1)))
    E('s_lshl_b32 %s, %s, 10' % (S(sT3), S(sT0)))
    E('s_add_u32 %s, %s, %s' % (S(sT1), S(sT1), S(sT3)))
    E('v_lshrrev_b32 v%d, 4, v0' % t2)
    E('v_and_b32 v%d, 15, v0' % t0)
    E('v_lshlrev_b32 v%d, 6, v%d' % (t1, t0))
    E('v_lshl_add_u32 v%d, v%d, 13, v%d' % (t1, t2, t1))
    E('v_add_u32 v%d, %s, v%d' % (vPF + 2, S(sT1), t1))


def setup_rest2(E):
    t0, t1, t2, t3 = vT, vT + 1, vT + 2, vT + 3
    E('s_lshl_b32 %s, %s, 5' % (S(sT1), S(sI)))
    E('s_add_u32 %s, %s, %s' % (S(sT1), S(sT1), S(sH)))
    E('s_lshl_b32 %s, %s, 10' % (S(sT1), S(sT1)))
    E('s_add_u32 %s, %s, %d' % (S(sT1), S(sT1), WS_F))
    E('s_cmp_lg_u32 %s, 0' % S(sW))
    E('s_cselect_b32 %s, 0x%x, %s' % (S(sT1), WS_SIZE, S(sT1)))
    E('v_mov_b32 v%d, 0' % t3)
    E('buffer_store_dword v%d, v%d, %s, %s offen %s' % (t3, vL16, S(sWS, 4), S(sT1), SC), 'st')
    E('v_lshrrev_b32 v%d, 1, v%d' % (t1, t0))
    E('v_xor_b32 v%d, v%d, v%d' % (t1, t1, t2))
    E('v_lshlrev_b32 v%d, 4, v%d' % (t1, t1))
    E('v_lshl_add_u32 v%d, v%d, 7, v%d' % (t1, t0, t1))
    E('v_add_u32 v%d, %s, v%d' % (vAR, S(sM0A), t1))
    E('v_xor_b32 v%d, 64, v%d' % (vAR + 1, vAR))
    E('v_bfe_u32 v%d, v0, 2, 2' % t0)
    E('v_lshl_add_u32 v%d, v%d, 3, v%d' % (t1, t2, t0))
    E('v_lshlrev_b32 v%d, 7, v%d' % (t1, t1))
    E('v_and_b32 v%d, 3, v0' % t2)
    E('v_lshl_add_u32 v%d, v%d, 3, v%d' % (t1, t2, t1))
    E('v_bfe_u32 v%d, v0, 3, 2' % t0)
    E('v_lshl_add_u32 v%d, v%d, 5, v%d' % (vWR, t0, t1))
    for c in range(1, 4): E('v_xor_b32 v%d, %d, v%d' % (vWR + c, 32 * c, vWR))
    for c in range(4): E('v_add_u32 v%d, 0x10000, v%d' % (vWR2 + c, vWR + c))
    E('s_sub_u32 %s, 15, %s' % (S(sT3), S(sI)))
    E('s_cmp_lt_u32 %s, 2' % S(sW))
    E('s_cselect_b32 %s, %s, %s' % (S(sT3), S(sT3), S(sI)))
    E('s_lshl_b32 %s, %s, 1' % (S(sT3), S(sT3)))
    E('s_and_b32 %s, %s, 1' % (S(sTB), S(sW)))
    E('s_add_u32 %s, %s, %s' % (S(sTB), S(sTB), S(sT3)))
    E('s_lshl_b32 %s, %s, 16' % (S(sROWX), S(sTB)))
    E('s_lshr_b32 %s, %s, 1' % (S(sT1), S(sT0)))
    E('s_mul_i32 %s, %s, 7' % (S(sT1), S(sT1)))
    E('s_and_b32 %s, %s, 1' % (S(sT0), S(sT0)))
    E('s_lshl_b32 %s, %s, 2' % (S(sFC), S(sT0)))
    E('s_add_u32 %s, %s, %s' % (S(sFC), S(sFC), S(sT2)))
    E('s_cmp_eq_u32 %s, 3' % S(sT2))
    E('s_cselect_b32 %s, 3, %s' % (S(sFC), S(sFC)))
    E('s_add_u32 %s, %s, %s' % (S(sFC), S(sFC), S(sT1)))
    E('s_lshl_b32 %s, %s, 7' % (S(sFB), S(sFC)))
    E('s_lshr_b32 %s, %s, 2' % (S(sT1), S(sI)))
    E('s_xor_b32 %s, %s, %s' % (S(sT1), S(sT1), S(sT0)))
    E('s_cmp_eq_u32 %s, 3' % S(sT2))
    E('s_cselect_b32 %s, %s, 0' % (S(sNOF), S(sT1)))
    E('s_mov_b32 %s, %s' % (S(sQS), f32(math.log2(math.e) / math.sqrt(128.0))))
    E('s_mov_b32 %s, %s' % (S(sNL), f32(-math.log2(math.e))))
    for k in range(4): E('s_add_u32 %s, %s, %d' % (S(sB[k]), S(sST), 4096 * k))
    E('s_mul_i32 %s, %s, 28' % (S(sHB[0]), S(sTB)))
    E('s_add_u32 %s, %s, %s' % (S(sHB[0]), S(sHB[0]), S(sFC)))
    E('s_lshl_b32 %s, %s, 13' % (S(sHB[0]), S(sHB[0])))
    E('s_add_u32 %s, %s, %d' % (S(sHB[0]), S(sHB[0]), WS_H))
    E('s_add_u32 %s, %s, 4096' % (S(sHB[1]), S(sHB[0])))
    E('v_cmp_eq_u32 vcc, 0, v0')
    E('v_mov_b32 v%d, 0x1000' % t0)
    E('s_lshl_b32 %s, %s, 2' % (S(sT1), S(sH)))
    E('s_cmp_eq_u32 %s, 0' % S(sW))
    E('s_cselect_b32 %s, %s, 0x1000' % (S(sT1), S(sT1)))
    E('s_cselect_b32 %s, 8, 0' % S(sNEED))
    E('v_mov_b32 v%d, %s' % (t1, S(sT1)))
    E('v_cndmask_b32 v%d, v%d, v%d, vcc' % (vFL, t0, t1))
    E('s_lshl_b32 %s, %s, 2' % (S(sT1), S(sI)))
    E('s_add_u32 %s, %s, 128' % (S(sT1), S(sT1)))
    E('v_mov_b32 v%d, %s' % (t1, S(sT1)))
    E('v_cndmask_b32 v%d, v%d, v%d, vcc' % (vFL + 1, t0, t1))
    E('v_mov_b32 v%d, 1' % (vFL + 2))
    E('s_lshl_b32 %s, %s, 13' % (S(sD8), S(sW)))
    E('s_add_u32 %s, %s, %s' % (S(sSRC), S(sKVH), S(sD8)))
    E('s_add_u32 %s, %s, 0x8000' % (S(sD8), S(sD8)))
    E('s_mov_b32 %s, %s' % (S(sNUL), S(sWS)))
    E('s_mov_b32 %s, %s' % (S(sNUL + 1), S(sWS + 1)))
    E('s_mov_b32 %s, 0x%x' % (S(sNUL + 2), 32 * MB))
    E('s_mov_b32 %s, 0x20000' % S(sNUL + 3))
    E('s_sub_u32 %s, %s, 2' % (S(sT0), S(sW)))
    E('s_cmp_lt_u32 %s, 2' % S(sW))
    E('s_cselect_b32 %s, 2, %s' % (S(sT0), S(sT0)))
    E('s_lshl_b32 %s, %s, 1' % (S(sTI), S(sI)))
    E('s_add_u32 %s, %s, %s' % (S(sTD), S(sTI), S(sT0)))
    E('s_add_u32 %s, %s, 1' % (S(sNX), S(sTI)))
    E('s_mov_b32 %s, 0' % S(sIT))
    E('s_mov_b32 s3, 0')
    E('s_mov_b64 %s, 0' % S(sBAD, 2))
    E(c_ctx_base(sTB))


def pf(srd, kind):
    return I('buffer_load_dword v%d, v%d, %s, 0 offen%s' % (vDUM, vPF + kind, S(srd, 4), ' nt' if (OPT['nt'] and kind == 2) else ''), 'pfx')
PFT = dict(c=(sC, 0), x=(sX, 0), k=(sWK, 2), v=(sWV, 2), q=(sWQ, 2), g=(sWG, 0), u=(sWU, 0), d=(sWD, 0), o=(sWO, 1))
def pf_list(): return [(t[0], float(t[1:])) for t in OPT['pfl'].split(',') if t]


def w_dma(kind, s, slot, si):
    if kind in 'KV':
        srd = [sWK if kind == 'K' else sWV] * 2; pitch = 8192; vo = vDW; base = sHC
        org = [128 * s * pitch, 128 * s * pitch + 128]
    elif kind == 'F':
        srd = [sWG, sWU]; pitch = 3584; vo = vDF; base = sFB
        org = [128 * s * pitch] * 2
    else:
        srd = [sWQ] * 2; pitch = 8192; vo = vDW; base = sHC
        org = [128 * (2 * s + p) * pitch + 128 * int(kind[1]) for p in range(2)]
    return [['s_add_u32 m0, %s, %d' % (S(sM0W), slot * 32768 + p * 16384 + a * 2048),
             's_add_u32 %s, %s, %d' % (S(sSO), S(base), org[p] + a * 16 * pitch),
             I('buffer_load_dwordx4 v%d, %s, %s offen %slds' % (vo, S(srd[p], 4), S(sSO), 'nt ' if (OPT['nt'] and kind != 'F') else ''), ('W', si))]
            for p in range(2) for a in range(4)]

def a_dma(which, n):
    srd, row = (sC, sROWC) if which == 'c' else (sX, sROWX)
    return [['s_add_u32 m0, %s, %d' % (S(sM0A), (n & 1) * 8192 + q * 1024),
             's_add_u32 %s, %s, %d' % (S(sSO), S(row), n * 128 + q * 8192),
             I('buffer_load_dwordx4 v%d, %s, %s offen lds' % (vDA + (q & 1), S(srd, 4), S(sSO)), (which, n))] for q in range(8)]

def a_reads(n):
    return ['ds_read_b128 %s, v%d offset:%d' % (Ac(16 * (2 * n + kk) + 4 * tt, 4), vAR + kk, (n & 1) * 8192 + tt * 2048)
            for tt in range(4) for kk in range(2)]
def a_regs(n): return {('a', r) for r in range(32 * n, 32 * n + 32)}
def frag(B, kk): return vSP + 16 * (B & 1) + 4 * kk
def w_reads(B, b):
    slot = (B >> 3) % 3
    base = (vWR2 if slot == 2 else vWR) + b['c']
    off = (slot & 1) * 32768 + b['pan'] * 16384
    return ['ds_read_b64_tr_b16 %s, v%d offset:%d' % (V(frag(B, kk) + 2 * jh, 2), base, off + kk * 4096 + jh * 512)
            for kk in range(4) for jh in range(2)]

def ab_prologue(E):
    pfl = pf_list()
    for n, t in pfl:
        if t == -2: E([pf(*PFT[n])])
    for g in a_dma('c', 0): E(g)
    w0 = w_dma('K', 0, 0, 0)
    for g in w0[:4]: E(g)
    for g in a_dma('c', 1): E(g)
    for g in w0[4:]: E(g)
    for g in w_dma('K', 1, 1, 1): E(g)
    setup_rest(E)
    for n, t in pfl:
        if t == -1: E([pf(*PFT[n])])
    setup_rest2(E)
    E(WaitV({('c', 0)}))
    E(a_reads(0))
    E(WaitV({('c', 1)}))
    E(a_reads(1))
    E(WaitL(a_regs(0)))
    for g in a_dma('c', 2): E(g)
    E(WaitV({('W', 0)}))
    E('s_barrier')
    E(w_reads(0, dict(c=0, pan=0)))
    E(WaitL())
    stamp(E, 1)


def c_vsetup(dummy):
    t0, t1 = vT, vT + 1
    ops = ['v_add_u32 v%d, 0x8000, v%d' % (vRD, vL16), 'v_add_u32 v%d, 0x18000, v%d' % (vRD + 1, vL16),
           's_lshr_b32 %s, %s, 1' % (S(sT0), S(sW)), 's_xor_b32 %s, %s, %s' % (S(sT0), S(sT0), S(sW)),
           's_and_b32 %s, %s, 1' % (S(sT0), S(sT0)), 's_lshl_b32 %s, %s, 14' % (S(sT0), S(sT0)),
           's_add_u32 %s, %s, 0x20000' % (S(sT1), S(sT0)), 'v_add_u32 v%d, %s, v%d' % (vQA, S(sT1), vL16),
           's_lshr_b32 %s, %s, 1' % (S(sT0), S(sW)), 's_mul_i32 %s, %s, %d' % (S(sT0), S(sT0), 0x20000 - dummy),
           'v_subrev_u32 v%d, %s, v%d' % (vXA, S(sT0), vQA)]
    ops += mask_ops()
    return ops

def mask_ops():
    t0, t1 = vT, vT + 1
    ops = ['v_lshrrev_b32 v%d, 4, v0' % t0, 'v_lshlrev_b32 v%d, 2, v%d' % (t0, t0), 'v_and_b32 v%d, 15, v0' % t1,
           'v_sub_u32 v%d, v%d, v%d' % (t0, t1, t0)]
    for r in range(4):
        ops += ['v_subrev_u32 v%d, %d, v%d' % (t1, r, t0), 'v_ashrrev_i32 v%d, 31, v%d' % (t1, t1), 'v_and_b32 v%d, %s, v%d' % (vMK + r, NEG, t1)]
    return ops

POLL1 = 'buffer_load_dword v%d, v%d, %s, 0 offen sc1' % (vFL + 3, vFL, S(sDBG, 4))
TEST1 = ['v_readfirstlane_b32 %s, v%d' % (S(sT2), vFL + 3), 's_cmp_ge_u32 %s, %s' % (S(sT2), S(sNEED))]


def ab_stream(E, ffn):
    stages = []
    for s in range(4): stages.append(('K', s))
    for s in range(4): stages.append(('V', s))
    if ffn:
        for s in range(4): stages.append(('F', s))
    for hf in range(2):
        for s in range(2): stages.append(('Q%d' % hf, s))
    NS = len(stages)
    NB = 8 * NS
    END = 16 * NB

    def blocks(si):
        kind, s = stages[si]
        out = []
        for b in range(8):
            if kind in 'KV': out.append(dict(pan=b >> 2, c=b & 3, ap=s, acc=vO + 16 * b, first=s == 0, swap=kind == 'V'))
            elif kind == 'F': out.append(dict(pan=b & 1, c=b >> 1, ap=s, acc=vO + 16 * b, first=s == 0, swap=False))
            else:
                base = vQ if kind == 'Q0' else vO
                out.append(dict(pan=b & 1, c=b >> 1, ap=2 * s + (b & 1), acc=base + 16 * (b >> 1), first=(s == 0 and (b & 1) == 0), swap=False))
        return out
    blk = [b for si in range(NS) for b in blocks(si)]

    mains = []
    for B, b in enumerate(blk):
        for tt in range(4):
            for kk in range(4):
                w = V(frag(B, kk), 4); x = Ac(16 * (4 * b['ap'] + kk) + 4 * tt, 4)
                acc = V(b['acc'] + 4 * tt, 4)
                c = '0' if (b['first'] and kk == 0) else acc
                mains.append('%s %s, %s, %s, %s' % (MF, acc, x if b['swap'] else w, w if b['swap'] else x, c))

    SIG = 11
    st_w = []
    for B in range(NB - 1):
        for k, r in enumerate(w_reads(B + 1, blk[B + 1])): st_w.append(Op(r, 16 * B, 16 * B + k + 3))
        need = {('v', r) for r in range(frag(B + 1, 0), frag(B + 1, 0) + 16)} | {('a', r) for r in range(64 * blk[B + 1]['ap'], 64 * blk[B + 1]['ap'] + 64)}
        g = 16 * B + 15
        if (B + 2) % 8 == 0 and B + 2 < NB:
            s = (B + 2) // 8
            tags = {('W', s)}
            if s == SIG: tags |= {'st'}
            if ffn and s == 14: tags |= {'poll'}
            if ffn and s == 15: tags |= {'kv0'}
            st_w.append(Op(WaitLV(need, tags), g, g))
            if ffn and s == 14: st_w.append(Op(spin(E, 'L_kv1', POLL1, vFL + 3, TEST1), g, g))
            st_w.append(Op('s_barrier', g, g))
            for x in stamp_ops(1 + s + (0 if ffn or s < 8 else 4)): st_w.append(Op(x, g, g))
        else:
            st_w.append(Op(WaitL(need), g, g))

    ev = []
    INF = 1 << 30
    for si in range(2, NS):
        t0 = max(8 * (si - 2) - 1, 0)
        for k, g in enumerate(w_dma(stages[si][0], stages[si][1], si % 3, si)):
            ev.append((t0 + k * (7.0 / 8 if si <= 4 else OPT['wspan'] / 8), 0, g, INF))
    def act(which, n, t_dma, span, t_rd):
        for k, g in enumerate(a_dma(which, n)):
            if k == 0: g = [WaitL(a_regs((n - 2) % 8))] + g
            ev.append((t_dma + k * span / 8.0, 1, g, INF))
        act_rd(which, n, t_rd)
    def act_rd(which, n, t_rd):
        for k, r in enumerate(a_reads(n)):
            if which == 'c': use = 8 * (n >> 1)
            elif ffn: use = 8 * (8 + (n >> 1))
            else: use = 8 * (8 + (n >> 2)) + ((n >> 1) & 1)
            ev.append((t_rd + k * 0.2, 2, ([WaitV({(which, n)})] if k == 0 else []) + [r], 16 * use - 6 - (7 - k)))
    act_rd('c', 2, 3.0)
    act('c', 3, 0, 2, 5.0)
    act('c', 4, 5.0, 3.0, 11)
    act('c', 5, 8, 2.0, 13.0)
    act('c', 6, 13.0, 3.0, 19)
    act('c', 7, 16, 2.0, 21.0)
    step = 6 if ffn else 4
    for n in range(8):
        T = 40 + step * n
        act('x', n, T - 2 * step + 2.1, OPT['xspan'], T)
    tpf = 0
    for n, t in pf_list():
        if t >= 0:
            t = t if ffn else min(t, 72)
            ev.append((t, 3, [pf(*PFT[n])], INF)); tpf = max(tpf, t)
    ev.append((8 * SIG - 1, -1, [I('buffer_atomic_add v%d, v%d, %s, 0 offen sc1' % (vFL + 2, vFL, S(sDBG, 4)), 'sig')], INF))
    if ffn:
        ev.append((102, 3, [I(POLL1, 'poll')], INF))
        for par in range(2):
            for k, g in enumerate(c_dma(par, 8, 'kv%d' % par, 32768 * par)):
                ev.append((111 + 2 * par + k * 0.25, 1, g, INF))
        for k, r in enumerate(c_reads(0)): ev.append((120 + k * 0.22, 2, [r], END - 5))
    ev.sort(key=lambda e: (e[0], e[1]))
    st_m = []
    for t, _, g, hard in ev:
        lo = int(t * 16)
        for k, x in enumerate(g):
            last = k == len(g) - 1
            isw = isinstance(x, (WaitL, WaitV))
            st_m.append(Op(x, lo if (last or isw) else None, min(lo + 24, hard) if last else None))

    eps = [[] for _ in range(4)]
    def cvt(d, a): return 'v_cvt_pk_bf16_f32 v%d, v%d, v%d' % (d, a, a + 1)
    def store(r, base, off, tag='st'):
        return I('buffer_store_dwordx4 %s, v%d, %s, %s offen offset:%d %s' % (V(r, 4), vL16, S(sWS, 4), S(base), off, SC), tag)
    def pack(d, a, b): return [cvt(d, a), cvt(d + 1, a + 2), cvt(d + 2, b), cvt(d + 3, b + 2)]
    def clr(r): return 'v_mov_b64 %s, 0' % V(r, 2)
    LAT = 2
    def done(si, b, tt): return 16 * (8 * si + b) + 4 * tt + 3 + LAT
    st_o = []
    kst, vst = OPT['kst'], OPT['vst']
    for p in range(4):
        for tt in range(4):
            a = vO + 16 * (2 * p) + 4 * tt; b = vO + 16 * (2 * p + 1) + 4 * tt
            d = vQ + 16 * p + 4 * tt
            ops = pack(d, a, b)
            hi = done(3, 2 * p + 1, tt) + 40
            eps[tt].append(Op(ops[0], done(3, 2 * p, tt))); eps[tt].append(Op(ops[1]))
            eps[tt].append(Op(ops[2], done(3, 2 * p + 1, tt))); eps[tt].append(Op(ops[3], None, hi))
            n = 4 * p + tt
            lo = max(hi + 1, 16 * 28 + kst * n)
            st_o.append(Op(store(d, sB[tt], p * 1024), lo, lo + 20))
    for k in range(4): st_o.append(Op('s_add_u32 %s, %s, %d' % (S(sB[k]), S(sST), 16384 + 4096 * k)))
    for c in range(8):
        for ks in range(2):
            a = vO + 16 * c + 8 * ks; b = a + 4
            n = 2 * c + ks
            d = (vQ + 4 * n) if ffn else a
            ops = pack(d, a, b)
            e = eps[2 * (c & 1) + ks]
            hi = done(7, c, 2 * ks + 1) + 40
            assert 16 * 28 + kst * n + 22 < done(7, c, 2 * ks)
            e.append(Op(ops[0], done(7, c, 2 * ks))); e.append(Op(ops[1]))
            e.append(Op(ops[2], done(7, c, 2 * ks + 1))); e.append(Op(ops[3], None, hi))
            lo = max(hi + 1, 16 * 60 + (vst if ffn else min(vst, 16)) * n)
            st_o.append(Op(store(d, sB[c >> 1], ((c & 1) * 2 + ks) * 1024), lo, lo + 20))
            assert lo + 22 < min(16 * 8 * (12 if ffn else 10), 16 * (8 * SIG - 1) - 1)
    q0 = 12 if ffn else 8
    if ffn:
        for fs in range(2):
            for tt in range(4):
                e = eps[tt]
                d = vO + 16 * (4 * fs) + 4 * tt
                for t in range(2):
                    g = vO + 16 * (4 * fs + 2 * t) + 4 * tt; u = g + 16
                    for r0 in (0, 2):
                        rs = (r0, r0 + 1)
                        for r in rs: e.append(Op('v_mul_f32 v%d, %s, v%d' % (g + r, S(sNL), g + r), done(11, 4 * fs + 2 * t, tt)))
                        for r in rs: e.append(Op('v_exp_f32 v%d, v%d' % (g + r, g + r)))
                        for r in rs: e.append(Op('v_add_f32 v%d, 1.0, v%d' % (g + r, g + r)))
                        for r in rs: e.append(Op('v_rcp_f32 v%d, v%d' % (g + r, g + r)))
                        for r in rs: e.append(Op('v_mul_f32 v%d, v%d, v%d' % (g + r, g + r, u + r), done(11, 4 * fs + 2 * t + 1, tt)))
                        e.append(Op(cvt(d + 2 * t + r0 // 2, g + r0)))
                e.append(Op(store(d, sHB[fs], tt * 1024, 'hst'), None, (16 * 8 * 14 - 2) if fs == 0 else 16 * 118))
                if fs == 1:
                    for b in (5, 6, 7, 4):
                        for r in (0, 2): e.append(Op(clr(vO + 16 * b + 4 * tt + r)))
    qs = [[] for _ in range(4)]
    for hf in range(2):
        base = vQ if hf == 0 else vO
        si = q0 + 2 * hf + 1
        for p in range(2):
            for tt in range(4):
                e = qs[tt]
                d = vQ + 16 * (2 * hf + p) + 4 * tt
                for t in range(2):
                    a = base + 16 * (2 * p + t) + 4 * tt
                    for r in range(4): e.append(Op('v_mul_f32 v%d, %s, v%d' % (a + r, S(sQS), a + r), done(si, 2 * (2 * p + t) + 1, tt)))
                    e.append(Op(cvt(d + 2 * t, a))); e.append(Op(cvt(d + 2 * t + 1, a + 2)))
                    if ffn and hf == 1:
                        for r in (0, 2): e.append(Op(clr(a + r)))
                if ffn:
                    wr = lambda pp: 'ds_write_b128 v%d, %s offset:%d' % (vXA, V(vQ + 16 * pp + 4 * tt, 4), 1024 * (4 * pp + tt))
                    if hf == 0 and p == 1:
                        e.append(Op(wr(0), 16 * 119)); e.append(Op(wr(1)))
                    if hf == 1: e.append(Op(wr(2 + p)))
    st_c = []
    if ffn:
        lo = 16 * max(88, int(tpf) + 3)
        for x in c_vsetup(0x10000): st_c.append(Op(x, lo, 16 * 110))
        for r in (0, 2): st_c.append(Op(clr(vLs + r), 16 * 119))
    rep = []
    schedule(E, mains, [st_w, st_m, st_o, st_c] + eps + qs, report=rep, prio={1: 0, 0: 1})
    E.notes.append('AB(ffn=%d) overflow cycles %d' % (ffn, rep[0]))
    if ffn:
        c_clear_small(E, False)
        E(WaitL({('a', r) for r in range(96)}))
        E('s_add_u32 %s, %s, %d' % (S(sSRC), S(sSRC), 65536))
        stamp(E, 17)
        c_check_exit(E, 0)
        return
    t0 = vT + 2
    E(I(POLL1, 'poll'))
    E('v_lshrrev_b32 v%d, 4, v0' % t0)
    E('v_lshlrev_b32 v%d, 4, v%d' % (t0, t0))
    for ks in range(16):
        E('buffer_load_dwordx4 %s, v%d, %s, 0 offen offset:%d' % (V(vO + 64 + 4 * ks, 4), t0, S(sGW, 4), ks * 64))
    E(c_vsetup(0))
    E(WaitV())
    E(spin(E, 'L_kv2', POLL1, vFL + 3, TEST1))
    E('s_barrier')
    for par in range(2):
        for g in c_dma(par, 8, 'kv%d' % par, 32768 * par): E(g)
    E('s_add_u32 %s, %s, %d' % (S(sSRC), S(sSRC), 65536))
    for f in range(16): E('ds_write_b128 v%d, %s offset:%d' % (vXA, V(vQ + 4 * f, 4), 1024 * f))
    for tt in range(4):
        for ks in range(16):
            acc = V(vSP + 4 * tt, 4)
            E('%s %s, %s, %s, %s' % (MF, acc, V(vO + 64 + 4 * ks, 4), Ac(16 * ks + 4 * tt, 4), acc if ks else '0'))
    E('s_lshl_b32 %s, %s, 8' % (S(sT0), S(sTB)))
    E('s_add_u32 %s, %s, %d' % (S(sT0), S(sT0), WS_G))
    E('v_and_b32 v%d, 15, v0' % t0)
    E('v_lshlrev_b32 v%d, 2, v%d' % (t0, t0))
    for op in ('v_mul_f32 v%%d, %s, v%%d' % S(sNL), 'v_exp_f32 v%d, v%d', 'v_add_f32 v%d, 1.0, v%d', 'v_rcp_f32 v%d, v%d'):
        for tt in range(4): E(op % (vSP + 4 * tt, vSP + 4 * tt))
    E('s_nop 0')
    for tt in range(4):
        E('buffer_store_dword v%d, v%d, %s, %s offen offset:%d %s' % (vSP + 4 * tt, t0, S(sWS, 4), S(sT0), tt * 64, SC), 'st')
    c_clear(E)
    c_clear_small(E)
    E(WaitLV(None, {'kv0'}))
    E('s_barrier')
    E(c_reads(0))
    E(WaitL())
    stamp(E, 17)


def aK(par, kt, p): return 128 * par + 4 * (4 * kt + p)
def aV(par, c, ks): return 128 * par + 64 + 4 * (2 * c + ks)
def c_entry_state(par):
    return ([{('a', r) for r in range(128 * par + 64 + 4 * f, 128 * par + 68 + 4 * f)} for f in range(8, 16)], [('kv', set())] * 16)
def c_check_exit(E, par):
    ok = {('a', r) for r in range(128 * par + 96, 128 * par + 128)}
    assert all(d <= ok for d in E.lq), E.lq
    assert all(not d for _, d in E.vq)

def c_reads(par):
    return ['ds_read_b128 %s, v%d offset:%d' % (Ac(128 * par + 4 * f, 4), vRD + par, 1024 * f) for f in range(32)]

def c_dma(par, n, tag='kv', add=0):
    out = []
    base = sD8 if n == 8 else sD16
    for k in range(n):
        g = []
        if k % 4 == 0:
            g = ['s_add_u32 m0, %s, %d' % (S(base), 65536 * par + 1024 * k), 's_add_u32 %s, %s, %d' % (S(sSO), S(sSRC), 1024 * k + add)]
        out.append(g + [I('buffer_load_dwordx4 v%d, %s, %s offen offset:%d %s lds' % (vL16, S(sNUL, 4), S(sSO), 1024 * (k % 4), SC), tag)])
    return out

def c_softmax(q, pp, kts, zero_rest=0):
    gaps = {}
    def put(g, x): gaps.setdefault(g, []).append(x)
    for k in range(8):
        kt = k >> 1
        a = vS + 2 * k
        d = vP + 8 * pp + k
        if kt < kts:
            for j in range(2):
                put(8 + 4 * k + 2 * j, 'v_exp_f32 v%d, v%d' % (a + j, a + j))
                put(13 + 4 * k, 'v_add_f32 v%d, v%d, v%d' % (vLs + q, vLs + q, a + j))
            put(11 + 4 * k, 'v_cvt_pk_bf16_f32 v%d, v%d, v%d' % (d, a, a + 1))
        elif kt < kts + zero_rest:
            put(11 + 4 * k, 'v_mov_b32 v%d, 0' % d)
    return gaps

def c_pv(q, par, pp, nks=2):
    out = []
    for c in range(8):
        for ks in range(2):
            o = V(vO + 32 * q + 4 * c, 4)
            out.append('%s %s, %s, %s, %s' % (MF, o, Ac(aV(par, c, ks), 4), V(vP + 8 * pp + 4 * ks, 4), o) if ks < nks else None)
    return out

def it_stamp():
    if not STAMPS: return []
    return ['s_add_u32 m0, %s, 18' % S(sIT)] + stamp_ops('m0')

def c_body(E, par, ndma, diag, reads=True, tail=()):
    E.set_state(c_entry_state(par))
    m = [None] * 128
    first = [[] for _ in range(128)]
    valu = [[] for _ in range(128)]
    for q in range(4):
        kts = q + 1 if diag else 4
        for kt in range(kts):
            for p in range(4):
                d = V(vS + 4 * kt, 4)
                c = d if p else (V(vMK, 4) if (diag and kt == q) else '0')
                m[32 * q + 4 * kt + p] = '%s %s, %s, %s, %s' % (MF, d, Ac(aK(par, kt, p), 4), V(vQ + 16 * p + 4 * q, 4), c)
        if q == 0: pv = c_pv(3, par ^ 1, 1)
        else: pv = c_pv(q - 1, par, (q - 1) & 1, (1 if q - 1 < 2 else 2) if diag else 2)
        m[32 * q + 16:32 * q + 32] = pv
        for g, ops in c_softmax(q, q & 1, kts, kts & 1).items():
            if 32 * q + g < 128: valu[32 * q + g] += ops
    for g, ops in c_softmax(3, 1, 4).items():
        if g >= 32: valu[g - 32] = ops + valu[g - 32]
    first[2] += [WaitLV(None, None), 's_barrier'] + it_stamp()
    if reads:
        rd = c_reads(par ^ 1)
        pos = [3 + 4 * k for k in range(31)]
        pos.insert(24, 97)
        for g, r in zip(pos, rd): first[g].append(r)
        first[120].append(WaitL({('a', r) for r in range(128 * (par ^ 1), 128 * (par ^ 1) + 96)}))
    for k, g in enumerate(c_dma(par, ndma) if ndma else []):
        at = 5 + 4 * k
        if len(g) > 1:
            first[at - 1].append(g[0]); first[at - 3 if k else 1].append(g[1])
        first[at].append(g[-1])
    sl = [100 + 2 * k for k in range(10)]
    tail = ['s_add_u32 %s, %s, 1' % (S(sIT), S(sIT))] + list(tail)
    if ndma: tail = ['s_add_u32 %s, %s, %d' % (S(sSRC), S(sSRC), 4096 * ndma)] + tail
    for g, x in zip(sl, tail): first[g].append(x)
    assert len(tail) <= len(sl)
    for g in range(128):
        if m[g]: E(m[g])
        E(first[g]); E(valu[g])
    c_check_exit(E, par ^ 1)

def c_tail(E, par):
    sm = c_softmax(3, 1, 4)
    ops = [x for g in sorted(sm) if g >= 32 for x in sm[g]]
    E([x for x in ops if 'exp' in x])
    E([x for x in ops if 'add' in x][:2])
    E([x for x in ops if 'cvt' in x])
    E([x for x in ops if 'add' in x][2:])
    E(c_pv(3, par, 1))

def lane_reduce(E, regs, op):
    t = vT
    for sw in ('v_permlane32_swap_b32', 'v_permlane16_swap_b32'):
        for k, r in enumerate(regs): E('v_mov_b32 v%d, v%d' % (t + k, r))
        for k, r in enumerate(regs): E('%s v%d, v%d' % (sw, t + k, r))
        for k, r in enumerate(regs): E('%s v%d, v%d, v%d' % (op, r, r, t + k))

def c_rowsum(E, qs, check=True):
    qs = list(qs)
    lane_reduce(E, [vLs + q for q in qs], 'v_add_f32')
    if check:
        E('s_mov_b32 %s, %s' % (S(sT0), L_LO if not OPT['forcebad'] else f32(1e30)))
        E('v_mov_b32 v%d, %s' % (vT + 1, L_HI))
        for k, q in enumerate(qs):
            E('v_med3_f32 v%d, v%d, %s, v%d' % (vT, vLs + q, S(sT0), vT + 1))
            E('v_cmp_neq_f32 %s, v%d, v%d' % ('vcc' if k & 1 else S(sE0, 2), vT, vLs + q))
            if k & 1:
                E('v_rcp_f32 v%d, v%d' % (vLs + qs[k - 1], vLs + qs[k - 1]))
                E('v_rcp_f32 v%d, v%d' % (vLs + q, vLs + q))
                E('s_or_b64 %s, %s, %s' % (S(sBAD, 2), S(sBAD, 2), S(sE0, 2)))
                E('s_or_b64 %s, %s, vcc' % (S(sBAD, 2), S(sBAD, 2)))
    else:
        for q in qs: E('v_rcp_f32 v%d, v%d' % (vLs + q, vLs + q))

def c_out(E, q):
    for p in range(4):
        a = vO + 32 * q + 8 * p
        E('s_add_u32 %s, %s, %d' % (S(sT0), S(sCTX), 4096 * p))
        for r in range(8): E('v_mul_f32 v%d, v%d, v%d' % (a + r, vLs + q, a + r))
        for r in range(4): E('v_cvt_pk_bf16_f32 v%d, v%d, v%d' % (a + r, a + 2 * r, a + 2 * r + 1))
        E('buffer_store_dwordx4 %s, v%d, %s, %s offen offset:%d %s' % (V(a, 4), vL16, S(sWS, 4), S(sT0), 1024 * q, SC), 'st')

def c_ctx_base(tb):
    return ['s_lshl_b32 %s, %s, 5' % (S(sCTX), S(tb)), 's_add_u32 %s, %s, %s' % (S(sCTX), S(sCTX), S(sH)),
            's_lshl_b32 %s, %s, 14' % (S(sCTX), S(sCTX)), 's_add_u32 %s, %s, %d' % (S(sCTX), S(sCTX), WS_CTX)]

def c_clear(E, qs=range(4)):
    for q in qs:
        for r in range(0, 32, 2): E('v_mov_b64 %s, 0' % V(vO + 32 * q + r, 2))
def c_clear_small(E, sums=True):
    if sums:
        for r in range(0, 4, 2): E('v_mov_b64 %s, 0' % V(vLs + r, 2))
    E('v_mov_b64 %s, 0' % V(vS + 10, 2))
    for r in range(12, 16): E('v_mov_b32 v%d, %s' % (vS + r, NEG))
    for r in range(0, 6, 2): E('v_mov_b64 %s, 0' % V(vP + 8 + r, 2))

def c_idle(E, par, signal, tail=()):
    E.set_state(c_entry_state(par))
    c_tail(E, par ^ 1)
    c_rowsum(E, range(4))
    c_out(E, 0)
    E(WaitLV(None, {'kv'}))
    E('s_barrier')
    E(it_stamp())
    if signal:
        E('buffer_atomic_add v%d, v%d, %s, 0 offen sc1' % (vFL + 2, vFL + 1, S(sDBG, 4)), 'sig')
    for g in c_dma(par, 16): E(g)
    E('s_add_u32 %s, %s, %d' % (S(sSRC), S(sSRC), 65536))
    for r in range(0, 4, 2): E('v_mov_b64 %s, %s' % (V(vS + r, 2), V(vQ + r, 2)))
    for f in range(16):
        E('ds_read_b128 %s, v%d offset:%d' % (V(vQ + 4 * f, 4), vQA, 1024 * f))
        E('ds_write_b128 v%d, %s offset:%d' % (vQA, V(vQ + 4 * f + 4, 4) if f < 15 else V(vS, 4), 1024 * f))
    rd = c_reads(par ^ 1)
    for q in range(1, 4):
        E(rd[8 * (q - 1):8 * q])
        c_out(E, q)
    E(rd[24:])
    c_clear(E)
    c_clear_small(E)
    E('s_sub_u32 %s, 33, %s' % (S(sT0), S(sTI)))
    E('s_sub_u32 %s, %s, %s' % (S(sT0), S(sT0), S(sW)))
    E(c_ctx_base(sT0))
    E('s_add_u32 %s, %s, 1' % (S(sIT), S(sIT)))
    E(tail)
    E(WaitL())
    c_check_exit(E, par ^ 1)

POLL2 = 'buffer_load_dword v%d, v%d, %s, 0 offen sc1' % (vFL + 3, vFL + 1, S(sDBG, 4))
TEST2 = ['v_readfirstlane_b32 %s, v%d' % (S(sT2), vFL + 3), 's_cmp_ge_u32 %s, 32' % S(sT2)]

def c_main(E):
    L = lambda x: 'L_c_' + x
    E('s_cmp_eq_u32 %s, 0' % S(sI))
    E('s_cbranch_scc1 %s' % L('mid'))
    E(L('e8') + ':')
    c_body(E, 0, 8, False)
    c_body(E, 1, 8, False, tail=['s_cmp_lt_u32 %s, %s' % (S(sIT), S(sTI))])
    E('s_cbranch_scc1 %s' % L('e8'))
    E(L('mid') + ':')
    E('s_sub_u32 %s, 15, %s' % (S(sT0), S(sI)))
    E('s_lshl_b32 %s, %s, 16' % (S(sT0), S(sT0)))
    E('s_add_u32 %s, %s, %s' % (S(sT0), S(sT0), S(sKVH)))
    E('s_add_u32 %s, %s, %s' % (S(sSRC), S(sT0), S(sD16)))
    E('s_cmp_eq_u32 %s, 2' % S(sW))
    E('s_cbranch_scc1 %s' % L('de'))
    E('s_branch %s' % L('e16'))
    E('.p2align 6')
    E(L('o16') + ':')
    c_body(E, 1, 16, False, tail=['s_cmp_eq_u32 %s, %s' % (S(sIT), S(sTD))])
    E('s_cbranch_scc1 %s' % L('de'))
    E(L('e16') + ':')
    chk = ['s_cmp_lg_u32 %s, %s' % (S(sIT), S(sNX))]
    c_body(E, 0, 16, False, tail=chk)
    E('s_cbranch_scc1 %s' % L('o16'))
    E(L('disp') + ':')
    E('s_cmp_eq_u32 %s, 17' % S(sIT))
    E('s_cbranch_scc1 %s' % L('fin'))
    E('s_add_u32 %s, %s, 1' % (S(sT0), S(sTI)))
    E('s_cmp_lg_u32 %s, %s' % (S(sIT), S(sT0)))
    E('s_cbranch_scc1 %s' % L('o0'))
    E('s_and_b32 %s, %s, 1' % (S(sT0), S(sW)))
    E('s_lshl_b32 %s, %s, 15' % (S(sT0), S(sT0)))
    E('v_add_u32 v%d, %s, v%d' % (vRD, S(sT0), vL16))
    E('v_add_u32 v%d, 0x10000, v%d' % (vRD + 1, vRD))
    E('s_add_u32 %s, %s, 1' % (S(sT0), S(sI)))
    E('s_lshl_b32 %s, %s, 16' % (S(sT0), S(sT0)))
    E('s_add_u32 %s, %s, %s' % (S(sT0), S(sT0), S(sKVH)))
    E('s_add_u32 %s, %s, %s' % (S(sSRC), S(sT0), S(sD16)))
    E('s_cmp_eq_u32 %s, 7' % S(sI))
    E('s_cselect_b32 %s, 17, 15' % S(sNX))
    E('s_cselect_b32 %s, 0, %s' % (S(sNUL + 2), S(sNUL + 2)))
    E('s_cmp_lt_u32 %s, 2' % S(sW))
    E('s_cbranch_scc1 %s' % L('o16'))
    E('s_cmp_eq_u32 %s, 3' % S(sW))
    E('s_cbranch_scc1 %s' % L('do'))
    c_idle(E, 1, True)
    E('s_branch %s' % L('e16'))
    E(L('de') + ':')
    c_body(E, 0, 16, True, tail=chk)
    E('s_cbranch_scc1 %s' % L('o16'))
    E('s_branch %s' % L('disp'))
    E(L('do') + ':')
    c_body(E, 1, 16, True)
    c_idle(E, 0, False, tail=chk)
    E('s_cbranch_scc1 %s' % L('o16'))
    E('s_branch %s' % L('disp'))
    E('.p2align 6')
    E(L('o0') + ':')
    c_body(E, 1, 0, False)
    c_body(E, 0, 0, False, reads=False)
    E(L('fin') + ':')
    E.set_state(c_entry_state(1))
    stamp(E, 35)
    E(I(POLL2, 'poll'))
    c_tail(E, 0)
    E('s_sub_u32 %s, 3, %s' % (S(sT0), S(sW)))
    E('s_lshl_b32 %s, %s, 15' % (S(sT0), S(sT0)))
    E('v_add_u32 v%d, %s, v%d' % (vXA, S(sT0), vL16))
    E('s_lshl_b32 %s, %s, 15' % (S(sT0), S(sW)))
    E('v_add_u32 v%d, %s, v%d' % (vRD, S(sT0), vL16))
    E(WaitLV(None, {'kv'}))
    E('s_barrier')
    st = E.state()
    E('s_cmp_ge_u32 %s, 2' % S(sW))
    E('s_cbranch_scc1 %s' % L('mb'))
    for keep, lab in (((0, 1), None), ((2, 3), L('mb'))):
        if lab: E(lab + ':')
        E.set_state(st)
        send = (2, 3) if keep == (0, 1) else (0, 1)
        for f in range(16): E('ds_write_b128 v%d, %s offset:%d' % (vXA, V(vO + 32 * send[0] + 4 * f, 4), 1024 * f))
        E('ds_write_b64 v%d, %s offset:16384' % (vXA, V(vLs + send[0], 2)))
        E(WaitL())
        E('s_barrier')
        E('ds_read_b64 %s, v%d offset:16384' % (V(vLs + send[0], 2), vRD))
        for f in range(16): E('ds_read_b128 %s, v%d offset:%d' % (V(vO + 32 * send[0] + 4 * f, 4), vRD, 1024 * f))
        for k in range(2): E('v_add_f32 v%d, v%d, v%d' % (vLs + keep[k], vLs + keep[k], vLs + send[k]))
        c_rowsum(E, keep)
        E(WaitL())
        for k, q in enumerate(keep):
            for r in range(0, 32, 2):
                E('v_pk_add_f32 %s, %s, %s' % (V(vO + 32 * q + r, 2), V(vO + 32 * q + r, 2), V(vO + 32 * send[k] + r, 2)))
            c_out(E, q)
        if not lab: E('s_branch %s' % L('done'))
    E(L('done') + ':')
    stamp(E, 36)


def c_guarded(E):
    vM, vNG, vAL = 2, 6, 16
    E('L_guard:')
    E('s_waitcnt vmcnt(0) lgkmcnt(0)')
    E('s_barrier')
    E.set_state(([], []))
    E('s_cmp_lt_u32 %s, 2' % S(sW))
    E('s_cbranch_scc1 L_guard_q')
    E('s_sub_u32 %s, 3, %s' % (S(sT0), S(sW)))
    E('s_lshl_b32 %s, %s, 14' % (S(sT0), S(sT0)))
    E('s_add_u32 %s, %s, 0x20000' % (S(sT0), S(sT0)))
    E('v_add_u32 v%d, %s, v%d' % (vT, S(sT0), vL16))
    for f in range(16): E('ds_read_b128 %s, v%d offset:%d' % (V(vQ + 4 * ((f + 1) % 16), 4), vT, 1024 * f))
    E(WaitL())
    E('L_guard_q:')
    c_clear(E)
    for r in range(4):
        E('v_mov_b32 v%d, 0' % (vLs + r)); E('v_mov_b32 v%d, 0' % (vMK + r)); E('v_mov_b32 v%d, 0' % (vNG + r))
        E('v_mov_b32 v%d, %s' % (vM + r, f32(-3e38)))
    E(c_ctx_base(sTB))
    E('s_mov_b32 %s, 0' % S(sIT))
    E('s_mov_b32 %s, %s' % (S(sSRC), S(sKVH)))
    E('L_guard_loop:')
    for f in range(32):
        if f % 4 == 0: E('s_add_u32 %s, %s, %d' % (S(sSO), S(sSRC), 1024 * f))
        E('buffer_load_dwordx4 %s, v%d, %s, %s offen offset:%d %s' % (Ac(4 * f, 4), vL16, S(sWS, 4), S(sSO), 1024 * (f % 4), SC))
    E('s_cmp_lg_u32 %s, %s' % (S(sIT), S(sTB)))
    E('s_cbranch_scc1 L_guard_full')
    E(mask_ops())
    for r in range(4): E('v_mov_b32 v%d, %s' % (vNG + r, NEG))
    E('L_guard_full:')
    E(WaitV())
    for q in range(4):
        for kt in range(4):
            for p in range(4):
                d = V(vS + 4 * kt, 4)
                c = d if p else ('0' if kt < q else V(vMK if kt == q else vNG, 4))
                E('%s %s, %s, %s, %s' % (MF, d, Ac(aK(0, kt, p), 4), V(vQ + 16 * p + 4 * q, 4), c))
        E('v_max3_f32 v%d, v%d, v%d, v%d' % (vAL, vS, vS + 1, vM + q))
        for r in range(2, 16, 2): E('v_max3_f32 v%d, v%d, v%d, v%d' % (vAL, vS + r, vS + r + 1, vAL))
        lane_reduce(E, [vAL], 'v_max_f32')
        E('v_sub_f32 v%d, v%d, v%d' % (vAL + 1, vM + q, vAL))
        E('v_exp_f32 v%d, v%d' % (vAL + 1, vAL + 1))
        E('v_mov_b32 v%d, v%d' % (vM + q, vAL))
        for r in range(16): E('v_sub_f32 v%d, v%d, v%d' % (vS + r, vS + r, vAL))
        for r in range(16): E('v_exp_f32 v%d, v%d' % (vS + r, vS + r))
        E('v_mul_f32 v%d, v%d, v%d' % (vLs + q, vLs + q, vAL + 1))
        for r in range(32): E('v_mul_f32 v%d, v%d, v%d' % (vO + 32 * q + r, vO + 32 * q + r, vAL + 1))
        for r in range(16): E('v_add_f32 v%d, v%d, v%d' % (vLs + q, vLs + q, vS + r))
        for r in range(8): E('v_cvt_pk_bf16_f32 v%d, v%d, v%d' % (vP + r, vS + 2 * r, vS + 2 * r + 1))
        E(c_pv(q, 0, 0))
    E('s_add_u32 %s, %s, 32768' % (S(sSRC), S(sSRC)))
    E('s_add_u32 %s, %s, 1' % (S(sIT), S(sIT)))
    E('s_cmp_le_u32 %s, %s' % (S(sIT), S(sTB)))
    E('s_cbranch_scc1 L_guard_loop')
    c_rowsum(E, range(4), False)
    for q in range(4): c_out(E, q)
    E('s_mov_b64 %s, 0' % S(sBAD, 2))
    E(WaitV())
    E('s_branch L_d_start')


vDV = 2
vDR = 6
vG = 12
vG1 = 20
vDX, vDY = 10, 11
vDZ, vDP = 16, 17
sDT, sDC = 70, 71
sDA, sDB, sDM = 61, 62, 63
sDA2, sDB2 = 72, 73

def d_setup(E):
    t0, t1, t2 = vT, vT + 1, vT + 2
    E('s_sub_u32 %s, 15, %s' % (S(sT0), S(sI)))
    E('s_bitcmp1_b32 s2, 0')
    E('s_cselect_b32 %s, %s, %s' % (S(sT0), S(sT0), S(sI)))
    E('s_lshl_b32 %s, %s, 1' % (S(sT0), S(sT0)))
    E('s_bfe_u32 %s, s2, 0x10002' % S(sT1))
    E('s_add_u32 %s, %s, %s' % (S(sDT), S(sT0), S(sT1)))
    E('s_and_b32 %s, %s, 3' % (S(sT0), S(sH)))
    E('s_lshl_b32 %s, %s, 1' % (S(sT0), S(sT0)))
    E('s_bfe_u32 %s, s2, 0x10001' % S(sT1))
    E('s_add_u32 %s, %s, %s' % (S(sDC), S(sT0), S(sT1)))
    E('s_lshl_b32 %s, %s, 15' % (S(sDM), S(sW)))
    E('s_mul_i32 %s, %s, 56' % (S(sDA), S(sDT)))
    E('s_mul_i32 %s, %s, 14' % (S(sT0), S(sW)))
    E('s_add_u32 %s, %s, %s' % (S(sDA), S(sDA), S(sT0)))
    E('s_lshl_b32 %s, %s, 12' % (S(sDA), S(sDA)))
    E('s_add_u32 %s, %s, %d' % (S(sDA), S(sDA), WS_H))
    E('s_lshl_b32 %s, %s, 15' % (S(sDB), S(sT0)))
    E('s_lshl_b32 %s, %s, 7' % (S(sT1), S(sDC)))
    E('s_add_u32 %s, %s, %s' % (S(sDB), S(sDB), S(sT1)))
    E('s_lshl_b32 %s, %s, 2' % (S(sDA2), S(sDT)))
    E('s_add_u32 %s, %s, %s' % (S(sDA2), S(sDA2), S(sW)))
    E('s_lshl_b32 %s, %s, 17' % (S(sDA2), S(sDA2)))
    E('s_add_u32 %s, %s, %d' % (S(sDA2), S(sDA2), WS_CTX))
    E('s_lshl_b32 %s, %s, 20' % (S(sDB2), S(sW)))
    E('s_add_u32 %s, %s, %s' % (S(sDB2), S(sDB2), S(sT1)))
    E('v_lshrrev_b32 v%d, 3, v0' % t0)
    E('v_bfe_u32 v%d, v0, 1, 2' % t1)
    E('v_lshrrev_b32 v%d, 4, v0' % t2)
    E('v_xor_b32 v%d, v%d, v%d' % (t1, t1, t2))
    E('v_lshlrev_b32 v%d, 5, v%d' % (t1, t1))
    E('v_lshl_add_u32 v%d, v%d, 10, v%d' % (t0, t0, t1))
    E('v_and_b32 v%d, 1, v0' % t1)
    E('v_lshl_add_u32 v%d, v%d, 4, v%d' % (vDV, t1, t0))
    for q in range(1, 4): E('v_add_u32 v%d, %d, v%d' % (vDV + q, 7168 * q, vDV))
    E('v_lshrrev_b32 v%d, 2, v0' % t0)
    E('v_lshlrev_b32 v%d, 7, v%d' % (t0, t0))
    E('v_and_b32 v%d, 3, v0' % t1)
    E('v_lshl_add_u32 v%d, v%d, 3, v%d' % (t0, t1, t0))
    E('v_bfe_u32 v%d, v0, 3, 2' % t2)
    E('v_lshl_add_u32 v%d, v%d, 5, v%d' % (t0, t2, t0))
    E('v_add_u32 v%d, %s, v%d' % (vDR, S(sDM), t0))
    for c in range(1, 4): E('v_xor_b32 v%d, %d, v%d' % (vDR + c, 32 * c, vDR))
    E('s_lshl_b32 %s, %s, 2' % (S(sT0), S(sW)))
    E('s_add_u32 %s, %s, 0x7000' % (S(sT0), S(sT0)))
    E('v_lshl_add_u32 v%d, v%d, 15, %s' % (t0, t1, S(sT0)))
    E('s_or_b32 %s, %s, %s' % (S(sT0), S(sBAD), S(sBAD + 1)))
    E('v_mov_b32 v%d, %s' % (t1, S(sT0)))
    E('ds_write_b32 v%d, v%d' % (t0, t1))


def d_main(E):
    NF, NC = 14, 32
    N = NF + NC
    D = 7
    accA, accB = vO, vO + 64
    def loads(n):
        f = n < NF
        sa, sb = (sDA, sDB) if f else (sDA2, sDB2)
        srd = sWD if f else sWO
        slot = n % 8
        g = ['s_add_u32 m0, %s, %d' % (S(sDM), 4096 * slot)]
        for tt in range(4):
            g.append(I('buffer_load_dwordx4 %s, v%d, %s, %s offen offset:%d %s' % (Ac(16 * slot + 4 * tt, 4), vL16, S(sWS, 4), S(sa), 1024 * tt, SC), ('A', n)))
        for q in range(4):
            g.append(I('buffer_load_dwordx4 v%d, %s, %s offen offset:%d lds' % (vDV + q, S(srd, 4), S(sb), 1024 * q), ('B', n)))
        g += ['s_add_u32 %s, %s, 4096' % (S(sa), S(sa)), 's_add_u32 %s, %s, 32768' % (S(sb), S(sb))]
        return g
    def reads(n):
        return ['ds_read_b64_tr_b16 %s, v%d offset:%d' % (V(vSP + 16 * (n & 1) + 4 * c + 2 * jh, 2), vDR + c, 4096 * (n % 8) + 2048 * jh)
                for c in range(4) for jh in range(2)]
    E(WaitV({'poll'}))
    E(spin(E, 'L_slot', POLL2, vFL + 3, TEST2))
    E('L_d_start:')
    E.set_state(([], [('st', set())] * 16))
    d_setup(E)
    for n in range(D - 1): E(loads(n))
    E('v_mov_b32 v%d, %s' % (vT, S(sDM)))
    E(WaitLV(None, {'st'}))
    E('s_barrier')
    E('ds_read_b128 %s, v%d offset:%d' % (V(vT, 4), vT, 0x7000))
    E('s_lshl_b32 %s, %s, 5' % (S(sT1), S(sI)))
    E('s_add_u32 %s, %s, %s' % (S(sT0), S(sT1), S(sH)))
    E('s_lshl_b32 %s, %s, 10' % (S(sT0), S(sT0)))
    E('s_add_u32 %s, %s, %d' % (S(sT0), S(sT0), WS_F))
    E('s_cmp_lg_u32 %s, 0' % S(sW))
    E('s_cselect_b32 %s, 0x%x, %s' % (S(sT0), WS_SIZE, S(sT0)))
    E('s_lshl_b32 %s, %s, 3' % (S(sT3), S(sW)))
    E('s_add_u32 %s, %s, %s' % (S(sT1), S(sT1), S(sT3)))
    E('s_lshl_b32 %s, %s, 10' % (S(sT1), S(sT1)))
    E('s_add_u32 %s, %s, %d' % (S(sT1), S(sT1), WS_F))
    E('v_and_b32 v%d, 7, v0' % vDP)
    E('v_lshl_add_u32 v%d, v%d, 10, %s' % (vDP, vDP, S(sT1)))
    E('v_mov_b32 v%d, 0' % vDZ)
    E(WaitL())
    E('v_or3_b32 v%d, v%d, v%d, v%d' % (vT, vT, vT + 1, vT + 2))
    E('v_or_b32 v%d, v%d, v%d' % (vT, vT, vT + 3))
    E('v_readfirstlane_b32 %s, v%d' % (S(sT2), vT))
    E('s_cmp_lg_u32 %s, 0' % S(sT2))
    E('s_cbranch_scc1 L_guard')
    E('buffer_store_dword v%d, v%d, %s, %s offen %s' % (vFL + 2, vDZ, S(sWS, 4), S(sT0), SC), 'sig')
    stamp(E, 37)
    E('s_lshl_b32 %s, %s, 8' % (S(sT0), S(sDT)))
    E('s_add_u32 %s, %s, %d' % (S(sT0), S(sT0), WS_G))
    E('v_and_b32 v%d, 15, v0' % vDX)
    E('v_lshlrev_b32 v%d, 2, v%d' % (vDY, vDX))
    for tt in range(4): E('buffer_load_dword v%d, v%d, %s, %s offen offset:%d %s' % (vG + tt, vDY, S(sWS, 4), S(sT0), 64 * tt, SC), 'g')
    E(loads(D - 1))
    E(WaitV({('B', 0)}))
    E(reads(0))
    E(WaitL())
    POLL3 = 'buffer_load_dword v%d, v%d, %s, 0 offen sc1' % (vFL + 3, vDP, S(sWS, 4))
    TEST3 = ['v_cmp_ne_u32 vcc, 1, v%d' % (vFL + 3), 's_cmp_eq_u64 vcc, 0']
    mains = []
    for n in range(N):
        acc = accB if n < NF else accA
        for c in range(4):
            for tt in range(4):
                d = V(acc + 16 * c + 4 * tt, 4)
                mains.append('%s %s, %s, %s, %s' % (MF, d, V(vSP + 16 * (n & 1) + 4 * c, 4), Ac(16 * (n % 8) + 4 * tt, 4), '0' if n in (0, NF) else d))
    st_r = []; st_l = []; st_v = []
    PL = OPT.get('pl', 3)
    for n in range(N):
        if n + D == NF - PL: st_l.append(Op(I(POLL3, 'poll'), 16 * n, 16 * n))
        if n + D == NF: st_l.append(Op([WaitV({'poll'})] + spin(E, 'L_ctx', POLL3, vFL + 3, TEST3) + stamp_ops(38), 16 * n, 16 * n))
        if n + D < N:
            for k, x in enumerate(loads(n + D)): st_l.append(Op(x, 16 * n, min(16 * n + k, 16 * n + 9)))
        if n + 1 < N:
            st_r.append(Op(WaitV({('B', n + 1)}), 16 * n + 9, 16 * n + 9))
            for k, x in enumerate(reads(n + 1)): st_r.append(Op(x, 16 * n + 9, 16 * n + 9 + k // 2))
            st_r.append(Op(WaitL(), 16 * n + 15, 16 * n + 15))
    for tt in range(4): st_v.append(Op('v_sub_f32 v%d, 1.0, v%d' % (vG1 + tt, vG + tt), 16 * NF + 8))
    for c in range(4):
        for tt in range(4):
            for r in range(4):
                a = accB + 16 * c + 4 * tt + r
                st_v.append(Op('v_mul_f32 v%d, v%d, v%d' % (a, vG1 + tt, a), 16 * NF + 8))
    schedule(E, mains, [st_l, st_r, st_v])
    stamp(E, 39)
    E('s_lshl_b32 %s, %s, 12' % (S(sT0), S(sW)))
    E('v_add_u32 v%d, %s, v%d' % (vDY, S(sT0), vL16))
    E('v_lshrrev_b32 v%d, 4, v0' % vDZ)
    E('v_lshlrev_b32 v%d, 10, v%d' % (vT, vDZ))
    E('v_lshl_add_u32 v%d, v%d, 4, v%d' % (vT, vDX, vT))
    E('s_lshl_b32 %s, %s, 14' % (S(sT0), S(sW)))
    E('v_add_u32 v%d, %s, v%d' % (vT, S(sT0), vT))
    E('s_barrier')
    for c in range(4):
        for tt in range(4):
            a = accA + 16 * c + 4 * tt
            for r in range(4): E('v_fma_f32 v%d, v%d, v%d, v%d' % (a + r, vG + tt, a + r, a + 64 + r))
            E('ds_write_b128 v%d, %s offset:%d' % (vDY, V(a, 4), 16384 * tt + 1024 * c))
    E('s_lshl_b32 %s, %s, 2' % (S(sT0), S(sDT)))
    E('s_add_u32 %s, %s, %s' % (S(sT0), S(sT0), S(sW)))
    E('s_lshl_b32 %s, %s, 14' % (S(sT0), S(sT0)))
    E('s_lshl_b32 %s, %s, 7' % (S(sT1), S(sDC)))
    E('s_add_u32 %s, %s, %s' % (S(sT0), S(sT0), S(sT1)))
    E('v_lshlrev_b32 v%d, 5, v%d' % (vDZ, vDZ))
    E('v_lshl_add_u32 v%d, v%d, 10, v%d' % (vDZ, vDX, vDZ))
    E(WaitL())
    E('s_barrier')
    for src in range(4):
        for j in range(4): E('ds_read_b128 %s, v%d offset:%d' % (V(vQ + 16 * src + 4 * j, 4), vT, 4096 * src + 256 * j))
    E(WaitL({('v', vQ + 31)}))
    for r in range(0, 16, 2): E('v_pk_add_f32 %s, %s, %s' % (V(vQ + r, 2), V(vQ + r, 2), V(vQ + 16 + r, 2)))
    E(WaitL())
    for r in range(0, 16, 2): E('v_pk_add_f32 %s, %s, %s' % (V(vQ + 32 + r, 2), V(vQ + 32 + r, 2), V(vQ + 48 + r, 2)))
    for r in range(0, 16, 2): E('v_pk_add_f32 %s, %s, %s' % (V(vQ + r, 2), V(vQ + r, 2), V(vQ + 32 + r, 2)))
    for r in range(8): E('v_cvt_pk_bf16_f32 v%d, v%d, v%d' % (vQ + r, vQ + 2 * r, vQ + 2 * r + 1))
    for k in range(2): E('buffer_store_dwordx4 %s, v%d, %s, %s offen offset:%d' % (V(vQ + 4 * k, 4), vDZ, S(sOUT, 4), S(sT0), 16 * k))


def kernel():
    E = Em(); E.notes = []; E.tailcode = []
    setup_first(E)
    ab_prologue(E)
    E('s_cmp_lg_u32 %s, 0' % S(sNOF))
    E('s_cbranch_scc1 L_ab_noffn')
    st = E.state()
    ab_stream(E, True)
    E('L_c_start:')
    c_main(E)
    d_main(E)
    if STAMPS:
        stamp(E, 40)
        E('s_waitcnt vmcnt(0)')
        stamp(E, 41)
        stamp_flush(E)
        if OPT.get('echo'):
            a, b, mult = [int(x) for x in OPT['echo'][1:].split('_')]
            cyc = OPT['echo'][0] == 'c'
            E('s_nop 4')
            E('v_readlane_b32 s65, v%d, %d' % (30 if cyc else 31, a))
            E('v_readlane_b32 s66, v%d, %d' % (30 if cyc else 31, b))
            E('v_readlane_b32 s67, v31, 41')
            E('s_nop 4')
            E('s_sub_u32 s65, s66, s65')
            E('s_mul_i32 s65, s65, %d' % mult)
            if cyc: E('s_lshr_b32 s65, s65, 4')
            E('s_add_u32 s65, s65, 3000')
            E('s_cmp_eq_u32 s2, %d' % OPT.get('echowg', 8))
            E('s_cselect_b32 s65, s65, 0')
            E('s_min_u32 s65, s65, 100000')
            E('L_echo:')
            E('s_memrealtime s[86:87]')
            E('s_waitcnt lgkmcnt(0)')
            E('s_sub_u32 s86, s86, s67')
            E('s_cmp_lt_u32 s86, s65')
            E('s_cbranch_scc1 L_echo')
    E('s_endpgm')
    E.set_state(st)
    E('L_ab_noffn:')
    ab_stream(E, False)
    E('s_branch L_c_start')
    c_guarded(E)
    for t in E.tailcode:
        E.set_state(([], []))
        E(t)
    E('L_end:')
    E('s_endpgm')
    return E


def finish(E, small=True):
    txt = []
    hdr = open('cdna_kernels/%s.s.ref' % NAME).read().split('\n')
    for l in hdr:
        if not l.startswith(';'): break
        if '@launch' not in l: txt.append(l)
    txt.append('; @launch grid=(256,1,1) block=(256,1,1) lds=163840')
    txt.append('.amdgcn_target "amdgcn-amd-amdhsa--gfx950"')
    if small: txt.append(MACROS)
    txt.append('.text')
    ins, n = hazard_pass(E.out, verbose=VERBOSE)
    sys.stderr.write('%d instructions, %d nops inserted, %d auto waits; %s\n' % (len(ins), n, len(E.auto_waits), '; '.join(E.notes)))
    if VERBOSE:
        for w in E.auto_waits: sys.stderr.write('   auto wait before %s\n' % (w,))
    txt.append('.globl %s\n.p2align 8\n.type %s,@function\n%s:' % (KN, KN, KN))
    txt.append(render(ins, small))
    txt.append('.section .rodata,"a"')
    txt.append('.p2align 6\n.amdhsa_kernel %s\n  .amdhsa_next_free_vgpr 512\n  .amdhsa_next_free_sgpr 102\n'
               '  .amdhsa_accum_offset 256\n  .amdhsa_group_segment_fixed_size 0\n  .amdhsa_kernarg_size 112\n'
               '  .amdhsa_user_sgpr_count 2\n  .amdhsa_user_sgpr_kernarg_segment_ptr 1\n'
               '  .amdhsa_system_sgpr_workgroup_id_x 1\n  .amdhsa_float_denorm_mode_32 3\n.end_amdhsa_kernel' % KN)
    return '\n'.join(txt) + '\n'


VERBOSE = False
if __name__ == '__main__':
    VERBOSE = '-v' in sys.argv
    STAMPS = '-s' in sys.argv
    for a in sys.argv[2:]:
        if '=' in a:
            k, v = a.split('='); OPT[k] = v if (not v or v[0].isalpha()) else (float(v) if '.' in v else int(v))
    open(sys.argv[1], 'w').write(finish(kernel(), '-l' not in sys.argv))
```
